```python
import torch

def _softmax(x, axis=-1):
    return torch.softmax(x, dim=axis)
def _gelu(x):
    return torch.nn.functional.gelu(x, approximate="tanh")
def _silu(x):
    return torch.nn.functional.silu(x)
def _sigmoid(x):
    return torch.sigmoid(x)
def _layernorm(x, axis=-1, eps=1e-5):
    m = x.mean(dim=axis, keepdim=True)
    v = x.var(dim=axis, keepdim=True, unbiased=False)
    return (x - m) / torch.sqrt(v + eps)
def _scatter_add(tgt, idx, src, axis=0):
    return tgt.clone().index_add_(axis, idx, src)
def _segment_sum(src, seg, n):
    out = torch.zeros((n,) + src.shape[1:], dtype=src.dtype)
    return out.index_add_(0, seg, src)
def _pad(x, pw):
    flat = tuple(v for pair in reversed(pw) for v in pair)
    return torch.nn.functional.pad(x, flat)

kernel_name = 'concat_heads__mha_block_cached__mha_block_cached__near_ridge'

def setup_inputs():

    _w = (lambda a: (lambda t: t.to(torch.bfloat16) if t.is_floating_point() else t)(torch.as_tensor(a)))
    def _A_setup():
        B, Sq, D = 32, 32, 576
        H, Sk, Dh = 32, 32, 128
        return {
            "x": _w((lambda *s: torch.randn(*s, dtype=torch.bfloat16) * 0.8)(B, Sq, D)),
            "k_cache": _w((lambda *s: torch.randn(*s, dtype=torch.bfloat16) * 0.8)(B, H, Sk, Dh)),
            "v_cache": _w((lambda *s: torch.randn(*s, dtype=torch.bfloat16) * 0.05)(B, H, Sk, Dh)),
            "wq": _w((lambda *s: torch.randn(*s, dtype=torch.bfloat16) * 0.8)(D, H * Dh) * (D ** -0.5)),
            "wo": _w((lambda *s: torch.randn(*s, dtype=torch.bfloat16) * 0.05)(H * Dh, D) * ((H * Dh) ** -0.5)),
        }
    _A_in = _A_setup()

    def _B_setup():
        B, Sq, D = 32, 32, 576
        H, Sk, Dh = 32, 32, 128
        return {
            "x": _w((lambda *s: torch.randn(*s, dtype=torch.bfloat16) * 0.8)(B, Sq, D)),
            "k_cache": _w((lambda *s: torch.randn(*s, dtype=torch.bfloat16) * 0.8)(B, H, Sk, Dh)),
            "v_cache": _w((lambda *s: torch.randn(*s, dtype=torch.bfloat16) * 0.05)(B, H, Sk, Dh)),
            "wq": _w((lambda *s: torch.randn(*s, dtype=torch.bfloat16) * 0.8)(D, H * Dh) * (D ** -0.5)),
            "wo": _w((lambda *s: torch.randn(*s, dtype=torch.bfloat16) * 0.05)(H * Dh, D) * ((H * Dh) ** -0.5)),
        }
    _B_in = _B_setup()

    return {
        "A_x": _A_in["x"],
        "A_k_cache": _A_in["k_cache"],
        "A_v_cache": _A_in["v_cache"],
        "A_wq": _A_in["wq"],
        "A_wo": _A_in["wo"],
        "B_x": _B_in["x"],
        "B_k_cache": _B_in["k_cache"],
        "B_v_cache": _B_in["v_cache"],
        "B_wq": _B_in["wq"],
        "B_wo": _B_in["wo"],
    }

def reference(A_x, A_k_cache, A_v_cache, A_wq, A_wo, B_x, B_k_cache, B_v_cache, B_wq, B_wo):
    def _A_ref(x, k_cache, v_cache, wq, wo):
        B, Sq, D = x.shape
        H, Dh = 32, 128
        q = (lambda x, *d: x.permute(*d))((x @ wq).reshape(B, Sq, H, Dh), 0, 2, 1, 3)
        scores = torch.einsum("bhqd,bhkd->bhqk", q, k_cache) * (Dh ** -0.5)
        p = _softmax(scores, axis=-1)
        o = torch.einsum("bhqk,bhkd->bhqd", p, v_cache)
        return (lambda x, *d: x.permute(*d))(o, 0, 2, 1, 3).reshape(B, Sq, H * Dh) @ wo

    def _B_ref(x, k_cache, v_cache, wq, wo):
        B, Sq, D = x.shape
        H, Dh = 32, 128
        q = (lambda x, *d: x.permute(*d))((x @ wq).reshape(B, Sq, H, Dh), 0, 2, 1, 3)
        scores = torch.einsum("bhqd,bhkd->bhqk", q, k_cache) * (Dh ** -0.5)
        p = _softmax(scores, axis=-1)
        o = torch.einsum("bhqk,bhkd->bhqd", p, v_cache)
        return (lambda x, *d: x.permute(*d))(o, 0, 2, 1, 3).reshape(B, Sq, H * Dh) @ wo

    a = _A_ref(A_x, A_k_cache, A_v_cache, A_wq, A_wo)
    b = _B_ref(B_x, B_k_cache, B_v_cache, B_wq, B_wo)
    return torch.concatenate([a, b], axis=-1)
```

```python
KN = 'concat_heads__mha_block_cached__mha_block_cached__near_ridge'

class A:
    def __init__(self):
        self.l = []
    def __call__(self, s):
        for x in s.split('\n'):
            self.l.append(x)
    def text(self):
        return '\n'.join(self.l) + '\n'

def kd(name, vgpr, sgpr=102, accum=None, extra=''):
    if accum is None:
        accum = min(256, (vgpr + 3) // 4 * 4)
    return f'''.p2align 6
.amdhsa_kernel {name}
  .amdhsa_next_free_vgpr {vgpr}
  .amdhsa_next_free_sgpr {sgpr}
  .amdhsa_accum_offset {accum}
  .amdhsa_group_segment_fixed_size 0
  .amdhsa_kernarg_size 104
  .amdhsa_user_sgpr_count 2
  .amdhsa_user_sgpr_kernarg_segment_ptr 1
  .amdhsa_system_sgpr_workgroup_id_x 1
{extra}.end_amdhsa_kernel
'''

def head(name):
    return f'''.globl {name}
.p2align 8
.type {name},@function
{name}:'''
```

```python
import sys
from asm import *

P_OFF = 0
PART_OFF = 8 << 20
CEXP = 0x3e0293ee

class Opt:
    nt_k = True; nt_v = True; nt_wq = True; nt_wo = True; nt_x = False
    rot2 = True
    k_start = 0; k_every = 2

def nt(b): return ' nt' if b else ''

def vr(b, n=4): return f'v[{b}:{b+n-1}]'

def decode(a):
    a('''s_cmp_ge_u32 s2, 256
s_cbranch_scc1 L_end%s
s_and_b32 s3, s2, 7
s_lshr_b32 s4, s2, 3
s_lshr_b32 s5, s3, 2          ; branch
s_and_b32 s6, s3, 3           ; hg
s_lshr_b32 s7, s4, 2          ; bg
s_and_b32 s24, s4, 3          ; sub
s_mul_i32 s25, s5, 40
s_add_u32 s26, s0, s25
s_addc_u32 s27, s1, 0
s_load_dwordx8 s[28:35], s[26:27], 0     ; x k v wq
s_load_dwordx2 s[36:37], s[26:27], 32    ; wo
s_load_dwordx2 s[38:39], s[0:1], 96      ; ws
v_lshrrev_b32 v1, 6, v0
v_and_b32 v0, 63, v0
v_readfirstlane_b32 s40, v1              ; wave id''' % a.sfx)

def srd(a, d, base, off_s, size):
    a(f's_add_u32 s{d}, s{base}, s{off_s}')
    a(f's_addc_u32 s{d+1}, s{base+1}, 0')
    a(f's_sub_u32 s{d+2}, {size}, s{off_s}')
    a(f's_mov_b32 s{d+3}, 0x20000')

class VM:
    def __init__(self): self.ops = []
    def add(self, tag, n=1): self.ops += [tag] * n
    def wait_for(self, tags):
        last = -1
        for i, t in enumerate(self.ops):
            if t in tags: last = i
        if last < 0: return None
        return len(self.ops) - 1 - last

WR_SLOTS, XR_SLOTS = 6, 4
XR_BASE = WR_SLOTS * 16384

def k1(o):
    a = A(); a.sfx = '1'
    name = 'k1_kernel'
    a(head(name))
    decode(a)
    a('s_waitcnt lgkmcnt(0)')
    a('s_mul_i32 s41, s7, %d' % (128 * 1152)); srd(a, 8, 28, 41, 1179648)
    a('s_lshl_b32 s41, s6, 3\ns_lshl_b32 s42, s24, 1\ns_add_u32 s43, s41, s42')
    a('s_lshl_b32 s41, s43, 8'); srd(a, 12, 34, 41, 4718592)
    a('s_lshl_b32 s41, s7, 7\ns_add_u32 s41, s41, s43\ns_lshl_b32 s41, s41, 13'); srd(a, 16, 30, 41, 8388608)
    a('s_lshl_b32 s41, s5, 5\ns_lshl_b32 s42, s7, 2\ns_add_u32 s41, s41, s42\ns_lshl_b32 s41, s41, 5\ns_add_u32 s41, s41, s43\ns_lshl_b32 s41, s41, 11')
    if P_OFF: a(f's_add_u32 s41, s41, {P_OFF}')
    srd(a, 20, 38, 41, P_OFF + (4 << 20))
    a('s_cmp_ge_u32 s40, 4\ns_cbranch_scc1 L_k1_prod')
    ACC = 0
    KR = 128
    FB = 192
    WA = 240; XA = 244; VK = 248; VT = 249; VKW = 250; VP = 251; T0 = 252
    a('s_and_b32 s41, s40, 1          ; mb\ns_lshr_b32 s42, s40, 1         ; hs')
    a('''v_lshrrev_b32 v1, 5, v0          ; hf
v_bfe_u32 v2, v0, 2, 2           ; r
v_and_b32 v3, 3, v0              ; c
v_bfe_u32 v4, v0, 4, 1           ; G&1
v_lshlrev_b32 v5, 3, v1
v_add_u32 v5, v5, v2
v_lshlrev_b32 v5, 9, v5          ; (8hf+r)*512
v_and_b32 v6, 1, v3
v_lshl_add_u32 v6, v4, 1, v6     ; cc
v_lshlrev_b32 v6, 4, v6
v_lshrrev_b32 v7, 1, v3
v_lshl_add_u32 v6, v7, 3, v6
v_add_u32 v5, v5, v6
s_lshl_b32 s44, s42, 8
v_add_u32 v5, s44, v5''')
    for n_ in range(4):
        a(f'v_xor_b32 v7, {n_}, v2\nv_lshl_add_u32 v{WA+n_}, v7, 6, v5')
    a('''v_and_b32 v2, 31, v0             ; m
v_bfe_u32 v3, v0, 1, 3           ; (m>>1)&7
v_xor_b32 v3, v3, v1             ; hf ^ f
v_lshlrev_b32 v3, 4, v3
v_lshl_add_u32 v3, v2, 7, v3
s_lshl_b32 s44, s41, 13''')
    a(f's_add_u32 s44, s44, {XR_BASE}\nv_add_u32 v3, s44, v3')
    for s_ in range(4):
        a(f'v_xor_b32 v{XA+s_}, {32*s_}, v3')
    a(f'v_lshlrev_b32 v{VK}, 4, v0')
    a(f'''v_lshrrev_b32 v3, 4, v0
v_and_b32 v4, 15, v0
v_xor_b32 v4, v4, v3
v_lshlrev_b32 v4, 4, v4
v_lshl_add_u32 v4, v3, 8, v4
s_lshl_b32 s44, s40, 14
v_add_u32 v{VKW}, s44, v4''')
    a(f'''v_bfe_u32 v3, v0, 4, 1
v_lshlrev_b32 v3, 10, v3
v_lshl_add_u32 v3, v1, 8, v3
v_and_b32 v4, 15, v0
v_lshl_add_u32 v{VP}, v4, 4, v3''')
    a(f'''v_and_b32 v4, 15, v0
v_xor_b32 v4, v4, v1
v_lshlrev_b32 v4, 4, v4
v_lshl_add_u32 v4, v2, 8, v4
v_add_u32 v{T0}, s44, v4''')
    a('s_lshl_b32 s45, s41, 19\ns_lshl_b32 s44, s42, 13\ns_add_u32 s46, s45, s44\ns_add_u32 s47, s46, 4096\ns_add_u32 s48, s46, 262144\ns_add_u32 s49, s48, 4096')
    a('s_lshl_b32 s45, s41, 17\ns_lshl_b32 s44, s42, 11\ns_add_u32 s50, s45, s44\ns_add_u32 s51, s50, 65536')
    for i in range(128): a(f'v_mov_b32 v{ACC+i}, 0')
    def reads(ks):
        t = ks // 2; ksub = ks % 2; buf = FB + (ks & 1) * 24
        slot = t % WR_SLOTS; wimm = (slot % 4) * 16384
        xs = (ks // 4) % XR_SLOTS
        r = []
        for mt in range(2):
            r.append(f'ds_read_b128 {vr(buf+16+4*mt)}, v{XA+ks%4} offset:{xs*16384+mt*4096}')
        for n_ in range(4):
            for u in range(2):
                r.append(f'ds_read_b64_tr_b16 {vr(buf+4*n_+2*u,2)}, v{WA+n_} offset:{wimm+(16*ksub+4*u)*512}')
        return [r[0], r[2], r[3], r[1]] + r[4:]
    def wadj(ks):
        t = ks // 2
        if ks % 2: return []
        cur = (t % WR_SLOTS) // 4; prev = ((t - 1) % WR_SLOTS) // 4 if t > 0 else 0
        if cur == prev: return []
        d = 0x10000 if cur > prev else 0xffff0000
        return [f'v_add_u32 v{WA+n_}, {hex(d)}, v{WA+n_}' for n_ in range(4)]
    kl = 0
    kw = 0
    a('s_barrier')
    for x in reads(0): a(x)
    a('s_waitcnt lgkmcnt(0)')
    for ks in range(36):
        buf = FB + (ks & 1) * 24
        fill = []
        if ks + 1 < 36: fill += wadj(ks + 1) + reads(ks + 1)
        if ks >= o.k_start and (ks - o.k_start) % o.k_every == 0 and kl < 16:
            mt, i = kl // 8, kl % 8
            fill.append(f'buffer_load_dwordx4 {vr(KR+4*kl)}, v{VK}, s[16:19], s{46+2*mt+i//4} offen offset:{(i%4)*1024}{nt(o.nt_k)}')
            kl += 1
        if ks >= 32:
            if ks == 32:
                assert kl == 16
                fill.append('s_waitcnt vmcnt(0)')
            for _ in range(4):
                mt, i = kw // 8, kw % 8
                fill.append(f'v_xor_b32 v{VT}, {64*(i&3)}, v{VKW}')
                fill.append(f'ds_write_b128 v{VT}, {vr(KR+4*kw)} offset:{mt*8192+i*1024}')
                kw += 1
        m = []
        for n_ in range(4):
            for mt in range(2):
                c = ACC + (mt * 4 + n_) * 16
                m.append(f'v_mfma_f32_32x32x16_bf16 {vr(c,16)}, {vr(buf+4*n_)}, {vr(buf+16+4*mt)}, {vr(c,16)}')
        per = -(-len(fill) // 6) if fill else 0
        for i, mm in enumerate(m):
            a(mm)
            for x in fill[i*per:(i+1)*per]: a(x)
        a('s_waitcnt lgkmcnt(0)')
        if ks % 2 == 0 and ks // 2 <= 16: a('s_barrier')
    for mt in range(2):
        for s_ in range(8):
            a(f'v_xor_b32 v{VT}, {32*s_}, v{T0}')
            a(f'ds_read_b128 {vr(KR+(mt*8+s_)*4)}, v{VT} offset:{mt*8192}')
    S = [FB, FB + 16]
    def cvt(mt, n_):
        c = ACC + (mt * 4 + n_) * 16
        for i in range(8): a(f'v_cvt_pk_bf16_f32 v{c+i}, v{c+2*i}, v{c+2*i+1}')
    for n_ in range(4):
        for mt in range(2): cvt(mt, n_)
        if n_ == 0: a('s_waitcnt lgkmcnt(0)')
        else: a('s_nop 1')
        for sp in range(2):
            for mt in range(2):
                c = ACC + (mt * 4 + n_) * 16 + 4 * sp
                src = '0' if (n_ == 0 and sp == 0) else vr(S[mt], 16)
                a(f'v_mfma_f32_32x32x16_bf16 {vr(S[mt],16)}, {vr(KR+(mt*8+2*n_+sp)*4)}, {vr(c)}, {src}')
    a('s_nop 15')
    a(f's_mov_b32 s44, {hex(CEXP)}')
    M = [0, 4]
    for mt in range(2):
        s = S[mt]; t = M[mt]
        a(f'v_max3_f32 v{t}, v{s}, v{s+1}, v{s+2}')
        for i in range(3, 15, 2): a(f'v_max3_f32 v{t}, v{t}, v{s+i}, v{s+i+1}')
        a(f'v_max_f32 v{t}, v{t}, v{s+15}')
        a(f'v_mov_b32 v{t+1}, v{t}')
    a('s_nop 1')
    for mt in range(2): a(f'v_permlane32_swap_b32 v{M[mt]}, v{M[mt]+1}')
    a('s_nop 1')
    for mt in range(2):
        t = M[mt]
        a(f'v_max_f32 v{t}, v{t}, v{t+1}')
        a(f'v_mul_f32 v{t}, s44, v{t}')
    for mt in range(2):
        s = S[mt]; t = M[mt]
        for i in range(16): a(f'v_fma_f32 v{s+i}, v{s+i}, s44, -v{t}')
        for i in range(16): a(f'v_exp_f32 v{s+i}, v{s+i}')
    for mt in range(2):
        s = S[mt]; t = M[mt]
        a(f'v_add_f32 v{t}, v{s}, v{s+1}\nv_add_f32 v{t+1}, v{s+2}, v{s+3}')
        for i in range(4, 16, 2): a(f'v_add_f32 v{t}, v{t}, v{s+i}\nv_add_f32 v{t+1}, v{t+1}, v{s+i+1}')
        a(f'v_add_f32 v{t}, v{t}, v{t+1}')
        a(f'v_mov_b32 v{t+1}, v{t}')
    a('s_nop 1')
    for mt in range(2): a(f'v_permlane32_swap_b32 v{M[mt]}, v{M[mt]+1}')
    a('s_nop 1')
    for mt in range(2):
        t = M[mt]
        a(f'v_add_f32 v{t}, v{t}, v{t+1}')
        a(f'v_rcp_f32 v{t}, v{t}')
    a('s_nop 0')
    for mt in range(2):
        s = S[mt]; t = M[mt]
        for i in range(16): a(f'v_mul_f32 v{s+i}, v{s+i}, v{t}')
        for i in range(8): a(f'v_cvt_pk_bf16_f32 v{s+i}, v{s+2*i}, v{s+2*i+1}')
        for sp in range(2):
            a(f'buffer_store_dwordx4 {vr(s+4*sp)}, v{VP}, s[20:23], s{50+mt} offen offset:{sp*512}')
    a('s_endpgm')
    a('L_k1_prod:')
    a('s_sub_u32 s41, s40, 4          ; p')
    a('v_lshrrev_b32 v10, 3, v0\nv_lshrrev_b32 v11, 4, v0\nv_and_b32 v12, 7, v0')
    a('s_mul_i32 s42, s41, %d' % (32 * 1152))
    for i in range(4):
        a(f'v_xor_b32 v13, {4*(i&1)}, v11\nv_xor_b32 v13, v13, v12\nv_lshlrev_b32 v13, 4, v13')
        a(f'v_add_u32 v14, {8*i}, v10\nv_mul_u32_u24 v14, 1152, v14\nv_add_u32 v13, v13, v14')
        a(f'v_add_u32 v13, s42, v13\nv_subrev_u32 v{2+i}, {1024*i}, v13')
    a('v_lshrrev_b32 v10, 5, v0\nv_and_b32 v12, 31, v0')
    a('s_lshl_b32 s42, s41, 16')
    for i in range(4):
        a(f'v_add_u32 v14, {2*i}, v10\nv_and_b32 v13, 3, v14\nv_lshlrev_b32 v13, 2, v13\nv_xor_b32 v13, v13, v12\nv_lshlrev_b32 v13, 4, v13')
        a(f'v_lshl_add_u32 v13, v14, 13, v13\nv_add_u32 v13, s42, v13\nv_subrev_u32 v{6+i}, {1024*i}, v13')
    a('s_lshl_b32 s43, s41, 12         ; p*4096 lds')
    vm = VM()
    def ldX(st):
        a(f's_add_u32 m0, s43, {XR_BASE + (st % XR_SLOTS) * 16384}')
        a(f's_mov_b32 s44, {st*128}')
        for i in range(4): a(f'buffer_load_dwordx4 v{2+i}, s[8:11], s44 offen offset:{1024*i}{nt(o.nt_x)} lds')
        vm.add(('X', st), 4)
    def ldW(t):
        a(f's_add_u32 m0, s43, {(t % WR_SLOTS) * 16384}')
        a(f's_mov_b32 s44, {t*262144}')
        for i in range(4): a(f'buffer_load_dwordx4 v{6+i}, s[12:15], s44 offen offset:{1024*i}{nt(o.nt_wq)} lds')
        vm.add(('W', t), 4)
    ldX(0); ldW(0); ldW(1); ldX(1); ldW(2); ldW(3); ldX(2); ldW(4); ldW(5); ldX(3)
    for t in range(-1, 17):
        n = vm.wait_for({('W', t + 1), ('X', (t + 1) // 2)})
        a(f's_waitcnt vmcnt({n})')
        a('s_barrier')
        if t >= 0:
            if t + WR_SLOTS <= 17: ldW(t + WR_SLOTS)
            if t % 2 == 1 and (t - 1) // 2 + XR_SLOTS <= 8: ldX((t - 1) // 2 + XR_SLOTS)
    a('L_end1:\ns_endpgm')
    return a.text(), kd(name, 256)

WO_SLOTS = 5; WO_SLOT = 18432; V_BASE = WO_SLOTS * WO_SLOT

def k2(o):
    a = A(); a.sfx = '2'
    name = 'k2_kernel'
    a(head(name))
    decode(a)
    a('s_waitcnt lgkmcnt(0)')
    a('s_mul_i32 s41, s6, %d\ns_mul_i32 s42, s24, 288\ns_add_u32 s41, s41, s42' % (1024 * 1152)); srd(a, 8, 36, 41, 4718592)
    a('s_lshl_b32 s41, s7, 7\ns_lshl_b32 s42, s6, 3\ns_add_u32 s41, s41, s42\ns_lshl_b32 s41, s41, 13'); srd(a, 12, 32, 41, 8388608)
    a('s_lshl_b32 s41, s5, 5\ns_lshl_b32 s43, s7, 2\ns_add_u32 s41, s41, s43\ns_lshl_b32 s41, s41, 5\ns_add_u32 s41, s41, s42\ns_lshl_b32 s41, s41, 11')
    if P_OFF: a(f's_add_u32 s41, s41, {P_OFF}')
    srd(a, 16, 38, 41, P_OFF + (4 << 20))
    a('s_lshl_b32 s41, s5, 3\ns_add_u32 s41, s41, s7\ns_lshl_b32 s41, s41, 2\ns_add_u32 s41, s41, s24\ns_lshl_b32 s41, s41, 2\ns_add_u32 s41, s41, s6\ns_mul_i32 s41, s41, 36864')
    a(f's_add_u32 s41, s41, {PART_OFF}')
    srd(a, 20, 38, 41, PART_OFF + 256 * 36864)
    if o.rot2: a('s_lshl_b32 s45, s24, 1\ns_add_u32 s45, s45, s7')
    else: a('s_mov_b32 s45, 0')
    def hidx(dst, i):
        a(f's_add_u32 s{dst}, s45, {i}\ns_and_b32 s{dst}, s{dst}, 7')
    a('s_cmp_ge_u32 s40, 4\ns_cbranch_scc1 L_k2_prod')
    ACC = 0
    OB = 72
    PV = 136
    WF = 168
    VF = 204
    PB = 220
    VA = 236
    WB = 244; WC = 245; VL = 246
    NWF = 9
    a('''v_lshrrev_b32 v1, 4, v0          ; G
v_bfe_u32 v2, v0, 2, 2           ; r
v_and_b32 v3, 3, v0              ; c
v_lshl_add_u32 v4, v1, 2, v2
v_mul_u32_u24 v4, 288, v4''')
    a(f'v_lshl_add_u32 v{WB}, v3, 3, v4')
    a('''v_and_b32 v4, 1, v1
v_lshl_add_u32 v4, v4, 2, v2     ; key&7 = 4(G&1)+r
v_lshrrev_b32 v5, 1, v1
v_lshl_add_u32 v5, v5, 4, v4     ; key (u=0)
v_lshlrev_b32 v5, 8, v5
v_lshl_add_u32 v5, v4, 5, v5     ; + 2*(key&7)*16
v_lshrrev_b32 v6, 1, v3
v_lshl_add_u32 v5, v6, 4, v5
v_and_b32 v6, 1, v3
v_lshl_add_u32 v5, v6, 3, v5
s_lshl_b32 s41, s40, 13''')
    a(f's_add_u32 s41, s41, {V_BASE}\nv_add_u32 v5, s41, v5')
    for T in range(8): a(f'v_xor_b32 v{VA+T}, {32*T}, v5')
    a(f'v_lshlrev_b32 v{VL}, 4, v0')
    a('s_lshl_b32 s46, s40, 16')
    def ldP(i):
        hidx(47, i)
        a(f's_lshl_b32 s47, s47, 11\ns_add_u32 s47, s47, s46')
        return [f'buffer_load_dwordx4 {vr(PB+(i&1)*8+4*qt)}, v{VL}, s[16:19], s47 offen offset:{qt*1024}' for qt in range(2)]
    for i in range(2):
        for x in ldP(i): a(x)
    for i in range(72): a(f'v_mov_b32 v{ACC+i}, 0')
    def vreads(i, tp):
        r = []
        for T in (2 * tp, 2 * tp + 1):
            for u in range(2):
                r.append(f'ds_read_b64_tr_b16 {vr(VF+((tp&1)*2+(T&1))*4+2*u,2)}, v{VA+T} offset:{(i&1)*32768+u*2048}')
        return r
    def pvm(i, tp):
        r = []
        for T in range(2):
            for qt in range(2):
                r.append(f'v_mfma_f32_16x16x32_bf16 {vr(PV+(tp&1)*16+(T*2+qt)*4)}, {vr(VF+((tp&1)*2+T)*4)}, {vr(PB+(i&1)*8+4*qt)}, 0')
        return r
    def pvc(i, tp):
        r = []
        for qt in range(2):
            for T in range(2):
                s = PV + (tp & 1) * 16 + (T * 2 + qt) * 4
                d = OB + (i & 1) * 32 + (tp * 2 + qt) * 4 + 2 * T
                r += [f'v_cvt_pk_bf16_f32 v{d}, v{s}, v{s+1}', f'v_cvt_pk_bf16_f32 v{d+1}, v{s+2}, v{s+3}']
        return r
    a('s_barrier')
    a('s_waitcnt vmcnt(2)')
    for x in vreads(0, 0) + vreads(0, 1): a(x)
    for tp in range(4):
        a('s_waitcnt lgkmcnt(4)' if tp < 3 else 's_waitcnt lgkmcnt(0)')
        for x in pvm(0, tp): a(x)
        if tp + 2 < 4:
            for x in vreads(0, tp + 2): a(x)
        else:
            a('s_nop 3')
        if tp >= 1:
            for x in pvc(0, tp - 1): a(x)
    a('s_nop 7')
    for x in pvc(0, 3): a(x)
    for x in ldP(2): a(x)
    a('s_barrier')
    def wread(g):
        i, ks, n_ = g // 36, (g // 9) % 4, g % 9
        d = WF + (g % NWF) * 4
        return [f'ds_read_b64_tr_b16 {vr(d+2*u,2)}, v{WC} offset:{(32*(ks&1)+16*u)*288+n_*32}' for u in range(2)]
    def setwc(u):
        return f'v_add_u32 v{WC}, {(u % WO_SLOTS) * WO_SLOT}, v{WB}'
    AHEAD = 6; DELAY = 2
    lg = []
    def emit_lds(x, tag):
        a(x); lg.append(tag)
    def wait_lds(tag):
        last = max(j for j, t in enumerate(lg) if t == tag)
        n = min(15, len(lg) - 1 - last)
        a(f's_waitcnt lgkmcnt({n})')
    a(setwc(0))
    for g in range(AHEAD):
        for x in wread(g): emit_lds(x, ('w', g))
    G = 8 * 36
    nxt = AHEAD; opened = 0
    for g in range(G):
        i, ks, n_ = g // 36, (g // 9) % 4, g % 9
        j = g % 36
        do_pv = i + 1 < 8
        wait_lds(('w', g))
        wf = WF + (g % NWF) * 4
        for qt in range(2):
            c = ACC + (n_ * 2 + qt) * 4
            ob = OB + (i & 1) * 32 + (ks * 2 + qt) * 4
            a(f'v_mfma_f32_16x16x32_bf16 {vr(c)}, {vr(wf)}, {vr(ob)}, {vr(c)}')
            if qt == 0:
                if opened < 15 and g == 18 * (opened + 1) - AHEAD + DELAY:
                    a('s_waitcnt lgkmcnt(0)')
                    a('s_barrier')
                    opened += 1
                    a(setwc(opened))
                while nxt < G and nxt <= g + AHEAD and nxt // 18 <= opened:
                    for x in wread(nxt): emit_lds(x, ('w', nxt))
                    nxt += 1
        if do_pv:
            if j == 0:
                a('s_waitcnt vmcnt(2)' if i + 2 < 8 else 's_waitcnt vmcnt(0)')
                for x in vreads(i + 1, 0): emit_lds(x, ('v', 0))
            if j == 1:
                for x in vreads(i + 1, 1): emit_lds(x, ('v', 1))
            if j in (3, 5, 7, 9):
                tp = (j - 3) // 2
                wait_lds(('v', tp))
                for x in pvm(i + 1, tp): a(x)
                if tp + 2 < 4:
                    for x in vreads(i + 1, tp + 2): emit_lds(x, ('v', tp + 2))
            if j in (6, 8, 10, 12):
                for x in pvc(i + 1, (j - 6) // 2): a(x)
            if j == 13 and i + 3 < 8:
                for x in ldP(i + 3): a(x)
    a('s_nop 7')
    a('s_mul_i32 s47, s40, 9216')
    for n_ in range(9):
        c = ACC + n_ * 8
        for q in range(4): a(f'v_cvt_pk_bf16_f32 v{c+q}, v{c+2*q}, v{c+2*q+1}')
        if n_ % 4 == 0 and n_: a('s_add_u32 s47, s47, 4096')
        a(f'buffer_store_dwordx4 {vr(c)}, v{VL}, s[20:23], s47 offen offset:{(n_%4)*1024}')
    a('s_endpgm')
    a('L_k2_prod:')
    a('s_sub_u32 s41, s40, 4          ; p')
    for i in range(9):
        a(f'v_add_u32 v12, {64*i}, v0\nv_mul_u32_u24 v13, 3641, v12\nv_lshrrev_b32 v13, 16, v13')
        a(f'v_mul_u32_u24 v14, 18, v13\nv_sub_u32 v12, v12, v14\nv_mul_u32_u24 v13, 1152, v13\nv_lshl_add_u32 v13, v12, 4, v13')
        a(f'v_subrev_u32 v{1+i}, {1024*(i%4)}, v13')
    a('v_lshrrev_b32 v12, 4, v0\nv_and_b32 v13, 15, v0')
    for par in range(2):
        a(f'v_add_u32 v14, {4*par}, v12\nv_lshlrev_b32 v14, 1, v14\nv_xor_b32 v14, v14, v13\nv_lshlrev_b32 v14, 4, v14\nv_lshl_add_u32 v{10+par}, v12, 8, v14')
    a('s_mul_i32 s42, s41, %d          ; p*32 rows' % (32 * 1152))
    a('s_and_b32 s43, s41, 1\ns_mul_i32 s43, s43, 9216')
    a('s_lshl_b32 s44, s41, 18         ; p*262144')
    a(f's_lshl_b32 s46, s41, 13\ns_add_u32 s46, s46, {V_BASE}')
    a('s_lshr_b32 s48, s41, 1          ; half')
    a('s_cmp_eq_u32 s48, 1\ns_cbranch_scc1 L_k2_prod1')
    for half in range(2):
        if half: a('L_k2_prod1:')
        vm = VM()
        def ldWo(u):
            if u % 2 != half: return
            hidx(47, u // 2)
            a('s_mul_i32 s47, s47, %d\ns_add_u32 s47, s47, s42' % (128 * 1152))
            for i in range(9):
                if i % 4 == 0:
                    a(f's_add_u32 m0, s43, {(u % WO_SLOTS) * WO_SLOT + i * 1024}\ns_nop 0')
                a(f'buffer_load_dwordx4 v{1+i}, s[8:11], s47 offen offset:{1024*(i%4)}{nt(o.nt_wo)} lds')
            vm.add(('W', u), 9)
        def ldV(i):
            hidx(47, i)
            a('s_lshl_b32 s47, s47, 13\ns_add_u32 s47, s47, s44')
            for k in range(8):
                if k % 4 == 0:
                    a(f's_add_u32 m0, s46, {(i & 1) * 32768 + k * 1024}')
                    a('s_add_u32 s47, s47, 4096' if k else 's_nop 0')
                a(f'buffer_load_dwordx4 v{10+(k&1)}, s[12:15], s47 offen offset:{1024*(k%4)}{nt(o.nt_v)} lds')
            vm.add(('V', i), 8)
        def wait(tags):
            n = vm.wait_for(tags)
            if n is not None: a(f's_waitcnt vmcnt({n})')
        ldV(0); ldWo(0); ldV(1); ldWo(1); ldWo(2); ldWo(3); ldWo(4)
        wait({('V', 0)}); a('s_barrier')
        wait({('V', 1), ('W', 0)}); a('s_barrier')
        ldV(2)
        for u in range(15):
            tags = {('W', u + 1)}
            if u % 2 == 1: tags.add(('V', (u + 1) // 2 + 1))
            wait(tags); a('s_barrier')
            if u + WO_SLOTS <= 15: ldWo(u + WO_SLOTS)
            if u % 2 == 0 and u // 2 + 3 <= 7: ldV(u // 2 + 3)
        a('s_endpgm')
    a('L_end2:\ns_endpgm')
    return a.text(), kd(name, 256)

def k3(o):
    a = A()
    name = 'k3_kernel'
    a(head(name))
    a('''s_cmp_ge_u32 s2, 256
s_cbranch_scc1 L_end3
s_load_dwordx2 s[4:5], s[0:1], 96
s_load_dwordx2 s[6:7], s[0:1], 80
v_lshrrev_b32 v1, 6, v0
v_and_b32 v0, 63, v0
v_readfirstlane_b32 s20, v1        ; nt
s_lshr_b32 s21, s2, 2              ; grp
s_and_b32 s22, s2, 3               ; w
s_mul_i32 s23, s21, 147456
s_mul_i32 s24, s22, 9216
s_add_u32 s23, s23, s24
s_lshl_b32 s24, s20, 10
s_add_u32 s23, s23, s24''')
    a(f's_add_u32 s23, s23, {PART_OFF}')
    a('s_waitcnt lgkmcnt(0)')
    a(f's_mov_b32 s8, s4\ns_mov_b32 s9, s5\ns_mov_b32 s10, {PART_OFF + 256*36864}\ns_mov_b32 s11, 0x20000')
    a('s_mov_b32 s12, s6\ns_mov_b32 s13, s7\ns_mov_b32 s14, 2359296\ns_mov_b32 s15, 0x20000')
    a('v_lshlrev_b32 v2, 4, v0')
    for sp in range(4):
        a(f'buffer_load_dwordx4 {vr(4+4*sp)}, v2, s[8:11], s23 offen')
        if sp < 3: a('s_add_u32 s23, s23, 36864')
    a('''s_lshr_b32 s24, s21, 5             ; branch
s_bfe_u32 s25, s21, 0x30002        ; bg
s_and_b32 s26, s21, 3              ; ntile
s_lshl_b32 s25, s25, 2
s_add_u32 s25, s25, s22
s_mul_i32 s25, s25, 73728          ; *32*2304
s_mul_i32 s24, s24, 1152
s_add_u32 s25, s25, s24
s_mul_i32 s26, s26, 288
s_add_u32 s25, s25, s26
s_lshl_b32 s24, s20, 5
s_add_u32 s25, s25, s24
s_add_u32 s26, s25, 36864          ; +16 rows
v_and_b32 v3, 15, v0
v_mul_u32_u24 v3, 2304, v3
v_lshrrev_b32 v1, 4, v0
v_lshl_add_u32 v3, v1, 3, v3
s_mov_b32 s27, 0xffff0000''')
    for sp in range(4):
        a(f's_waitcnt vmcnt({3-sp})')
        for d in range(4):
            s = 4 + 4 * sp + d
            if sp == 0:
                a(f'v_lshlrev_b32 v{20+2*d}, 16, v{s}\nv_and_b32 v{21+2*d}, s27, v{s}')
            else:
                a(f'v_lshlrev_b32 v28, 16, v{s}\nv_and_b32 v29, s27, v{s}\nv_add_f32 v{20+2*d}, v{20+2*d}, v28\nv_add_f32 v{21+2*d}, v{21+2*d}, v29')
    for d in range(4): a(f'v_cvt_pk_bf16_f32 v{4+d}, v{20+2*d}, v{21+2*d}')
    a('buffer_store_dwordx2 v[4:5], v3, s[12:15], s25 offen\nbuffer_store_dwordx2 v[6:7], v3, s[12:15], s26 offen')
    a('L_end3:\ns_endpgm')
    return a.text(), kd(name, 32)

def gen(o=Opt):
    t = '; @launch kernel=k1_kernel grid=(256,1,1) block=(512,1,1) lds=163840\n'
    t += '; @launch kernel=k2_kernel grid=(256,1,1) block=(512,1,1) lds=157696\n'
    t += '; @launch kernel=k3_kernel grid=(256,1,1) block=(576,1,1) lds=0\n'
    t += '.amdgcn_target "amdgcn-amd-amdhsa--gfx950"\n.text\n'
    ks = [k1(o), k2(o), k3(o)]
    for c, _ in ks: t += c
    t += '.section .rodata,"a"\n'
    for _, d in ks: t += d
    return t

if __name__ == '__main__':
    open(sys.argv[1], 'w').write(gen())
```

```python
import re
def regs(tok):
    tok = tok.strip().lstrip('-')
    m = re.fullmatch(r'([vs])\[(\d+):(\d+)\]', tok)
    if m: return {(m.group(1), i) for i in range(int(m.group(2)), int(m.group(3)) + 1)}
    m = re.fullmatch(r'([vs])(\d+)', tok)
    if m: return {(m.group(1), int(m.group(2)))}
    if tok == 'vcc': return {('s', 'vcc')}
    if tok in ('vcc_lo', 'vcc_hi'): return {('s', 'vcc')}
    if tok == 'm0': return {('s', 'm0')}
    if tok == 'exec': return {('s', 'exec')}
    return set()
TRANS = ('v_exp_f32', 'v_rcp_f32', 'v_log_f32', 'v_rsq_f32', 'v_sqrt_f32')
def parse(line):
    line = line.split(';')[0].strip()
    if not line or line.endswith(':') or line.startswith('.'): return None
    p = line.split(None, 1)
    op = p[0]; rest = p[1] if len(p) > 1 else ''
    ops = [x.strip() for x in rest.split(',')]
    if ops:
        last = ops[-1].split()
        ops[-1] = last[0] if last else ''
        mods = last[1:]
    else: mods = []
    d = dict(op=op, ops=ops, mods=mods, line=line)
    w = set(); r = set()
    if op.startswith('v_mfma'):
        d['k'] = 'mfma'; d['passes'] = 8 if '32x32' in op else 4
        w = regs(ops[0]); d['A'] = regs(ops[1]) | regs(ops[2]); d['C'] = regs(ops[3]); r = d['A'] | d['C']
    elif op.startswith('v_permlane'):
        d['k'] = 'valu'; d['perm'] = True; w = regs(ops[0]) | regs(ops[1]); r = set(w)
    elif op.startswith('v_cmp'):
        d['k'] = 'valu'; w = regs(ops[0]); r = set().union(*[regs(x) for x in ops[1:]])
    elif op.startswith('v_readfirstlane') or op.startswith('v_readlane'):
        d['k'] = 'valu'; d['rl'] = True; w = regs(ops[0]); r = set().union(*[regs(x) for x in ops[1:]])
    elif op.startswith('v_'):
        d['k'] = 'valu'; w = regs(ops[0]); r = set().union(*[regs(x) for x in ops[1:]]) if len(ops) > 1 else set()
        if op.startswith('v_writelane') or op.startswith('v_fmac'): r |= w
        if op.startswith('v_cndmask') and len(ops) == 3: r |= {('s', 'vcc')}
    elif op.startswith('ds_read'):
        d['k'] = 'ds'; w = regs(ops[0]); r = regs(ops[1])
    elif op.startswith('ds_write'):
        d['k'] = 'ds'; r = set().union(*[regs(x) for x in ops])
    elif op.startswith('buffer_load') or op.startswith('global_load'):
        d['k'] = 'vmem'
        if 'lds' in mods or '_lds_' in op: r = set().union(*[regs(x) for x in ops]) | {('s', 'm0')}; d['dma'] = True
        else: w = regs(ops[0]); r = set().union(*[regs(x) for x in ops[1:]])
    elif op.startswith('buffer_store') or op.startswith('buffer_atomic') or op.startswith('global_store'):
        d['k'] = 'vmem'; r = set().union(*[regs(x) for x in ops]); d['store'] = regs(ops[0]) if 'x4' in op or 'x3' in op else set()
        if op.startswith('buffer_atomic') and 'sc0' in mods: w = regs(ops[0])
    elif op == 's_nop':
        d['k'] = 'nop'; d['n'] = int(ops[0], 0) + 1
    elif op.startswith('s_'):
        d['k'] = 'salu'
        if op.startswith('s_cmp') or op.startswith('s_cbranch') or op in ('s_waitcnt', 's_barrier', 's_branch', 's_endpgm', 's_setprio', 's_sleep'):
            r = set().union(*[regs(x) for x in ops]) if ops else set()
        else:
            w = regs(ops[0]); r = set().union(*[regs(x) for x in ops[1:]]) if len(ops) > 1 else set()
    else:
        raise ValueError(line)
    d['w'] = w; d['r'] = r
    return d
def check(text):
    ins = []
    for ln in text.split('\n'):
        if ln.strip().startswith('.section'): break
        d = parse(ln)
        if d: ins.append(d)
    errs = []
    for i, c in enumerate(ins):
        dist = 0
        for j in range(i - 1, max(-1, i - 24), -1):
            p = ins[j]
            if p['op'] in ('s_endpgm', 's_branch'): break
            need = 0
            pw = p['w']
            if p['k'] == 'valu':
                vw = {x for x in pw if x[0] == 'v'}; sw = {x for x in pw if x[0] == 's'}
                if c['k'] == 'mfma' and vw & c['r']: need = max(need, 2)
                if c.get('perm') and vw & c['r']: need = max(need, 2)
                if c.get('rl') and vw & c['r']: need = max(need, 1)
                if p['op'] in TRANS and c['k'] == 'valu' and c['op'] not in TRANS and vw & c['r']: need = max(need, 1)
                if sw & c['r']:
                    if c['k'] == 'vmem': need = max(need, 5)
                    elif c['k'] == 'valu': need = max(need, 2)
                    elif c['k'] == 'salu': need = max(need, 1)
            if p['k'] == 'mfma':
                big = p['passes'] == 8
                if c['k'] == 'mfma':
                    if pw & c['A']: need = max(need, 12 if big else 8)
                    if pw & c['C'] and not (pw == c['C'] and p['passes'] == c['passes']): need = max(need, 10 if big else 6)
                    if pw & c['w'] and not (pw & c['C']): need = max(need, 10 if big else 6)
                elif pw & (c['r'] | c['w']): need = max(need, 12 if big else 8)
                if c['k'] == 'valu' and p['C'] & c['w']: need = max(need, 7 if big else 3)
            if p['k'] == 'salu' and ('s', 'm0') in pw and c.get('dma'): need = max(need, 1)
            if p.get('store') and p['store'] & c['w'] and c['k'] in ('valu',): need = max(need, 2)
            if p['k'] == 'valu' and ('s', 'exec') in pw: pass
            if dist < need: errs.append(f'need {need} have {dist}: [{p["line"]}] -> [{c["line"]}]')
            dist += p.get('n', 1)
            if dist >= 20: break
    return errs
if __name__ == '__main__':
    import sys
    e = check(open(sys.argv[1]).read())
    print(len(e), 'hazards'); print('\n'.join(e[:40]))
```

```python
import sys
from asm import *
import hazard

P_OFF = 0
FLAG_OFF = 4 << 20
XFLAG = 1 << 17
X_OFF = 8 << 20
WS_SIZE = 32 << 20
STAMP_OFF = 64 << 20
CEXP = 0x3e0293ee
R_BASE = 98304; PRING = 81920; XR_BASE = 65536; DSLOT = 20480

class Opt:
    nt_k = False; nt_v = False; nt_wq = False; nt_wo = False; nt_x = False
    stamp = False
    rot1 = True
    runs = [{1: 'K0', 5: 'K1', 9: 'V0', 13: 'V1'}, {3: 'K0', 7: 'K1', 11: 'V0', 14: 'V1'}]
    pflag_J = 30
    amp = 0

def nt(b): return ' nt' if b else ''
def vr(b, n=4): return f'v[{b}:{b+n-1}]'

class Stamper:
    def __init__(self, a, on): self.a = a; self.on = on; self.n = 0
    def __call__(self, rt=False):
        if not self.on: return
        a = self.a
        a('s_memrealtime s[72:73]' if rt else 's_memtime s[72:73]')
        a('s_waitcnt lgkmcnt(0)')
        a(f'v_writelane_b32 v{255 - self.n // 64}, s72, {self.n % 64}')
        self.n += 1
        assert self.n <= 128
    def flush(self):
        if not self.on: return
        a = self.a
        a('s_mov_b32 s76, s38\ns_mov_b32 s77, s39\ns_mov_b32 s78, 0x10000000\ns_mov_b32 s79, 0x20000')
        a(f's_lshl_b32 s72, s2, 3\ns_add_u32 s72, s72, s40\ns_lshl_b32 s72, s72, 9\ns_add_u32 s72, s72, {STAMP_OFF}')
        a('v_mbcnt_lo_u32_b32 v253, -1, 0\nv_mbcnt_hi_u32_b32 v253, -1, v253\nv_lshlrev_b32 v253, 2, v253')
        a('buffer_store_dword v255, v253, s[76:79], s72 offen\nbuffer_store_dword v254, v253, s[76:79], s72 offen offset:256')

class VM:
    def __init__(self): self.ops = []
    def add(self, tag, n=1): self.ops += [tag] * n
    def wait_for(self, tags):
        last = -1
        for i, t in enumerate(self.ops):
            if t in tags: last = i
        if last < 0: return None
        n = len(self.ops) - 1 - last
        return min(n, 63)

def srd(a, d, base, off_s, size):
    a(f's_add_u32 s{d}, s{base}, s{off_s}')
    a(f's_addc_u32 s{d+1}, s{base+1}, 0')
    a(f's_sub_u32 s{d+2}, {size}, s{off_s}')
    a(f's_mov_b32 s{d+3}, 0x20000')

def gen(o=Opt):
    a = A()
    name = KN + '_kernel'
    a('; @launch grid=(256,1,1) block=(512,1,1) lds=163840')
    a('.amdgcn_target "amdgcn-amd-amdhsa--gfx950"\n.text')
    a(head(name))
    a('''s_cmp_ge_u32 s2, 256
s_cbranch_scc1 L_end
s_and_b32 s3, s2, 7
s_lshr_b32 s4, s2, 3
s_lshr_b32 s5, s3, 2          ; branch
s_mul_i32 s25, s5, 40
s_add_u32 s26, s0, s25
s_addc_u32 s27, s1, 0
s_load_dwordx8 s[28:35], s[26:27], 0     ; x k v wq
s_load_dwordx2 s[36:37], s[26:27], 32    ; wo
s_load_dwordx4 s[52:55], s[0:1], 80
s_load_dwordx2 s[38:39], s[0:1], 96      ; ws
s_and_b32 s6, s3, 3           ; hg
s_lshr_b32 s7, s4, 2          ; bg
s_and_b32 s24, s4, 3          ; sub
v_lshrrev_b32 v1, 6, v0
v_and_b32 v0, 63, v0
v_readfirstlane_b32 s40, v1''')
    st = Stamper(a, o.stamp); st(True); st()
    if o.amp: a('s_memrealtime s[80:81]')
    a('s_lshl_b32 s41, s6, 3\ns_lshl_b32 s42, s24, 1\ns_add_u32 s43, s41, s42')
    a('s_waitcnt lgkmcnt(0)')
    a(f's_mov_b32 s20, s38\ns_mov_b32 s21, s39\ns_mov_b32 s22, {WS_SIZE}\ns_mov_b32 s23, 0x20000')
    a('s_lshl_b32 s48, s5, 5\ns_lshl_b32 s42, s7, 2\ns_add_u32 s48, s48, s42\ns_lshl_b32 s48, s48, 5\ns_add_u32 s48, s48, s41\ns_lshl_b32 s48, s48, 11')
    if P_OFF: a(f's_add_u32 s48, s48, {P_OFF}')
    a('s_and_b32 s49, s7, 1')
    a('s_cmp_ge_u32 s40, 4\ns_cbranch_scc1 L_prod')

    ACC = 0; FB = 128; WA = 176; XA = 180; KR = 184
    VL = 248; KB = 249; WB = 250; WS_ = 251; VB = 252
    VT = 247
    a('s_and_b32 s41, s40, 1          ; mb\ns_lshr_b32 s42, s40, 1         ; hs')
    a('''v_lshrrev_b32 v1, 5, v0          ; hf
v_bfe_u32 v2, v0, 2, 2           ; r
v_and_b32 v3, 3, v0              ; c
v_bfe_u32 v4, v0, 4, 1           ; G&1
v_lshlrev_b32 v5, 3, v1
v_add_u32 v5, v5, v2
v_lshlrev_b32 v5, 9, v5          ; (8hf+r)*512
v_and_b32 v6, 1, v3
v_lshl_add_u32 v6, v4, 1, v6     ; cc
v_lshlrev_b32 v6, 4, v6
v_lshrrev_b32 v7, 1, v3
v_lshl_add_u32 v6, v7, 3, v6
v_add_u32 v5, v5, v6
s_lshl_b32 s44, s42, 8
v_add_u32 v5, s44, v5''')
    for n_ in range(4):
        a(f'v_xor_b32 v7, {n_}, v2\nv_lshl_add_u32 v{WA+n_}, v7, 6, v5')
    a('s_cmp_eq_u32 s24, 3\ns_cselect_b32 s44, 32, 0')
    a(f'''v_lshl_add_u32 v5, v1, 2, v2     ; 4hf+r
v_mul_u32_u24 v6, 320, v5
v_lshl_add_u32 v6, v4, 5, v6
v_lshl_add_u32 v6, v3, 3, v6
v_add_u32 v{WB}, s44, v6
v_lshl_add_u32 v6, v4, 4, v5     ; 16(G&1)+4hf+r
v_mul_u32_u24 v6, 320, v6
v_lshl_add_u32 v6, v3, 3, v6
s_add_u32 s44, s44, 256
v_add_u32 v{WS_}, s44, v6
v_lshlrev_b32 v6, 8, v5          ; key*256
v_lshl_add_u32 v6, v2, 6, v6     ; + r*64
v_lshl_add_u32 v6, v4, 5, v6     ; + (G&1)*32
v_lshl_add_u32 v6, v3, 3, v6     ; + c*8  ((c>>1)*16 + (c&1)*8)
s_lshl_b32 s44, s40, 13''')
    a(f's_add_u32 s44, s44, {R_BASE}\nv_add_u32 v{VB}, s44, v6')
    a('''v_and_b32 v2, 31, v0             ; m
v_bfe_u32 v3, v0, 1, 3           ; (m>>1)&7
v_xor_b32 v3, v3, v1
v_lshlrev_b32 v3, 4, v3
v_lshl_add_u32 v3, v2, 7, v3
s_lshl_b32 s44, s41, 13''')
    a(f's_add_u32 s44, s44, {XR_BASE}\nv_add_u32 v3, s44, v3')
    for s_ in range(4): a(f'v_xor_b32 v{XA+s_}, {32*s_}, v3')
    a(f'v_lshlrev_b32 v{VL}, 4, v0')
    a(f'''v_and_b32 v4, 15, v0
v_xor_b32 v4, v4, v1
v_lshlrev_b32 v4, 4, v4
v_lshl_add_u32 v4, v2, 8, v4
s_lshl_b32 s44, s40, 14
s_add_u32 s44, s44, {R_BASE}
v_add_u32 v{KB}, s44, v4''')
    a('s_lshl_b32 s45, s41, 17\ns_lshl_b32 s44, s24, 1\ns_add_u32 s44, s44, s42\ns_lshl_b32 s44, s44, 11\ns_add_u32 s50, s45, s44\ns_add_u32 s50, s50, s48\ns_add_u32 s51, s50, 65536')
    a(f's_xor_b32 s44, s42, s49\ns_lshl_b32 s44, s44, 13\ns_lshl_b32 s45, s41, 12\ns_add_u32 s46, s44, s45\ns_add_u32 s46, s46, {PRING}')
    a(f's_lshl_b32 s57, s2, 2\ns_add_u32 s57, s57, s40\ns_lshl_b32 s57, s57, 7\ns_add_u32 s57, s57, {FLAG_OFF}')
    for i in range(128): a(f'v_mov_b32 v{ACC+i}, 0')
    def reads(ks):
        t = ks // 2; ksub = ks % 2; buf = FB + (ks & 1) * 24
        wimm = ((t + 2) % 4) * 16384
        xs = (ks // 4) % 2
        r = []
        for mt in range(2):
            r.append(f'ds_read_b128 {vr(buf+16+4*mt)}, v{XA+ks%4} offset:{xs*16384+mt*4096}')
        for n_ in range(4):
            for u in range(2):
                r.append(f'ds_read_b64_tr_b16 {vr(buf+4*n_+2*u,2)}, v{WA+n_} offset:{wimm+(16*ksub+4*u)*512}')
        return [r[0], r[2], r[3], r[1]] + r[4:]
    st(); a('s_barrier'); st()
    for x in reads(0): a(x)
    a('s_waitcnt lgkmcnt(0)')
    kq = [(mt, s_) for s_ in range(8) for mt in range(2)]
    for ks in range(36):
        buf = FB + (ks & 1) * 24
        fill = []
        if ks + 1 < 36: fill += reads(ks + 1)
        if 31 <= ks <= 34:
            for _ in range(4):
                mt, s_ = kq.pop(0)
                if mt == 0: fill.append(f'v_xor_b32 v253, {32*s_}, v{KB}')
                fill.append(f'ds_read_b128 {vr(KR+(mt*8+s_)*4)}, v253 offset:{mt*8192}')
        if ks == 33:
            fill.append(f'v_mov_b32 v{XA}, {PRING}')
            fill.append(f'ds_read_b32 v{XA+1}, v{XA}')
        m = []
        for n_ in range(4):
            for mt in range(2):
                c = ACC + (mt * 4 + n_) * 16
                m.append(f'v_mfma_f32_32x32x16_bf16 {vr(c,16)}, {vr(buf+4*n_)}, {vr(buf+16+4*mt)}, {vr(c,16)}')
        per = -(-len(fill) // 6) if fill else 0
        for i, mm in enumerate(m):
            a(mm)
            for x in fill[i*per:(i+1)*per]: a(x)
        if ks < 35: a('s_waitcnt lgkmcnt(0)')
        if ks % 2 == 0: st(); a('s_barrier'); st()
        if ks == 34: a(f'v_readfirstlane_b32 s56, v{XA+1}       ; nonce')
    st()
    S = [FB, FB + 16]
    def cvts(n_):
        r = []
        for mt in range(2):
            c = ACC + (mt * 4 + n_) * 16
            r += [f'v_cvt_pk_bf16_f32 v{c+i}, v{c+2*i}, v{c+2*i+1}' for i in range(8)]
        return r
    a('s_nop 4')
    for x in cvts(0): a(x)
    for n_ in range(4):
        nx = cvts(n_ + 1) if n_ < 3 else []
        k = 0
        for sp in range(2):
            for mt in range(2):
                c = ACC + (mt * 4 + n_) * 16 + 4 * sp
                src = '0' if (n_ == 0 and sp == 0) else vr(S[mt], 16)
                a(f'v_mfma_f32_32x32x16_bf16 {vr(S[mt],16)}, {vr(KR+(mt*8+2*n_+sp)*4)}, {vr(c)}, {src}')
                for x in nx[4*k:4*k+4]: a(x)
                k += 1
    a(f's_mov_b32 s44, {hex(CEXP)}\ns_mov_b32 s45, {hex(CEXP)}')
    a(f'v_add_u32 v8, s46, v{VL}')
    a('s_nop 8')
    st()
    M = [0, 4]
    for i in (0, 3, 5, 7, 9, 11, 13, 15):
        for mt in range(2):
            s = S[mt]; t = M[mt]
            if i == 0: a(f'v_max3_f32 v{t}, v{s}, v{s+1}, v{s+2}')
            elif i < 15: a(f'v_max3_f32 v{t}, v{t}, v{s+i}, v{s+i+1}')
            else: a(f'v_max_f32 v{t}, v{t}, v{s+15}')
    for mt in range(2): a(f'v_mov_b32 v{M[mt]+1}, v{M[mt]}')
    a('s_nop 0')
    for mt in range(2): a(f'v_permlane32_swap_b32 v{M[mt]}, v{M[mt]+1}')
    a('s_nop 0')
    for mt in range(2): a(f'v_max_f32 v{M[mt]}, v{M[mt]}, v{M[mt]+1}')
    for mt in range(2): a(f'v_mul_f32 v{M[mt]}, s44, v{M[mt]}')
    for mt in range(2):
        s = S[mt]; t = M[mt]
        for i in range(0, 16, 2): a(f'v_pk_fma_f32 {vr(s+i,2)}, {vr(s+i,2)}, s[44:45], {vr(t,2)} op_sel_hi:[1,0,0] neg_lo:[0,0,1] neg_hi:[0,0,1]')
        for i in range(16): a(f'v_exp_f32 v{s+i}, v{s+i}')
    for i in range(0, 16, 2):
        for mt in range(2):
            s = S[mt]; t = M[mt]
            if i == 0: continue
            if i == 2: a(f'v_pk_add_f32 {vr(t,2)}, {vr(s,2)}, {vr(s+2,2)}')
            else: a(f'v_pk_add_f32 {vr(t,2)}, {vr(t,2)}, {vr(s+i,2)}')
    for mt in range(2): a(f'v_add_f32 v{M[mt]}, v{M[mt]}, v{M[mt]+1}')
    for mt in range(2): a(f'v_mov_b32 v{M[mt]+1}, v{M[mt]}')
    a('s_nop 0')
    for mt in range(2): a(f'v_permlane32_swap_b32 v{M[mt]}, v{M[mt]+1}')
    a('s_nop 0')
    for mt in range(2): a(f'v_add_f32 v{M[mt]}, v{M[mt]}, v{M[mt]+1}')
    for mt in range(2): a(f'v_rcp_f32 v{M[mt]}, v{M[mt]}')
    for mt in range(2):
        s = S[mt]; t = M[mt]
        if mt == 0: a('s_nop 0')
        for i in range(0, 16, 2): a(f'v_pk_mul_f32 {vr(s+i,2)}, {vr(s+i,2)}, {vr(t,2)} op_sel_hi:[1,0]')
        for i in range(8): a(f'v_cvt_pk_bf16_f32 v{s+i}, v{s+2*i}, v{s+2*i+1}')
        for sp in range(2):
            a(f'buffer_store_dwordx4 {vr(s+4*sp)}, v{VL}, s[20:23], s{50+mt} offen offset:{sp*1024} sc1')
            a(f'ds_write_b128 v8, {vr(s+4*sp)} offset:{mt*2048+sp*1024}')
    A32 = 0; A16 = 64; OB = 72; PV = 160; WF = 192; SF = 224; VF = 136; PF = 232; VA = 240; WC = 244; WSC = 245; PA = 246
    NWF = 8; AHEAD = 7; DELAY = 3
    for i in range(72): a(f'v_mov_b32 v{i}, 0')
    for t in range(4): a(f'v_xor_b32 v{VA+t}, {64*t}, v{VB}')
    a(f's_lshl_b32 s44, s40, 11\ns_add_u32 s44, s44, {PRING}\nv_add_u32 v{PA}, s44, v{VL}')
    a(f'v_mov_b32 v{WC}, v{WB}\nv_mov_b32 v{WSC}, v{WS_}')
    a('s_waitcnt lgkmcnt(0)')
    st(); a('s_barrier'); st()
    lg = []
    def lds(x, tag): a(x); lg.append(tag)
    def wait_lds(*tags):
        last = max(j for j, t in enumerate(lg) if t in tags)
        n = min(15, len(lg) - 1 - last)
        if wait_lds.done >= last: return
        a(f's_waitcnt lgkmcnt({n})'); wait_lds.done = len(lg) - 1 - n
    wait_lds.done = -1
    def pread(pos): return [(f'ds_read_b128 {vr(PF+4*s_)}, v{PA} offset:{(pos&1)*8192+s_*1024}', ('p', pos)) for s_ in range(2)]
    def vread(pos, t): return [(f'ds_read_b64_tr_b16 {vr(VF+(t&1)*8+4*s_+2*u,2)}, v{VA+t} offset:{(pos&1)*32768+(16*s_+8*u)*256}', ('v', pos, t)) for s_ in range(2) for u in range(2)]
    def pvm(pos, t):
        wait_lds(('p', pos), ('v', pos, t))
        c = vr(PV + (t & 1) * 16, 16)
        a(f'v_mfma_f32_32x32x16_bf16 {c}, {vr(VF+(t&1)*8)}, {vr(PF)}, 0')
        a(f'v_mfma_f32_32x32x16_bf16 {c}, {vr(VF+(t&1)*8+4)}, {vr(PF+4)}, {c}')
    def pvc(pos, t):
        s = PV + (t & 1) * 16; d = OB + (pos & 1) * 32 + t * 8
        return [f'v_cvt_pk_bf16_f32 v{d+i}, v{s+2*i}, v{s+2*i+1}' for i in range(8)]
    def wread(G):
        j = G % 8; b = (G // 8) % 2
        row = 32 * b + 16 * (j // 4)
        return [(f'ds_read_b64_tr_b16 {vr(WF+(G%NWF)*4+2*u,2)}, v{WC} offset:{(row+8*u)*320+(j%4)*64}', ('w', G)) for u in range(2)]
    def sread(B):
        return [(f'ds_read_b64_tr_b16 {vr(SF+(B&1)*4+2*u,2)}, v{WSC} offset:{(32*(B&1)+8*u)*320}', ('s', B)) for u in range(2)]
    def swaps(B):
        f = OB + ((B // 4) & 1) * 32 + (B % 4) * 8
        return [f'v_permlane16_swap_b32 v{f+i}, v{f+4+i}' for i in range(4)]
    def smm(B, qt):
        wait_lds(('s', B))
        f = OB + ((B // 4) & 1) * 32 + (B % 4) * 8 + 4 * qt
        c = vr(A16 + 4 * qt)
        a(f'v_mfma_f32_16x16x32_bf16 {c}, {vr(SF+(B&1)*4)}, {vr(f)}, {c}')
    for x, t in pread(0) + vread(0, 0) + vread(0, 1): lds(x, t)
    pvm(0, 0)
    for x, t in vread(0, 2): lds(x, t)
    pvm(0, 1)
    for x, t in vread(0, 3): lds(x, t)
    a('s_nop 1')
    for x in pvc(0, 0): a(x)
    pvm(0, 2)
    for G in range(3):
        for x, t in wread(G): lds(x, t)
    for x in pvc(0, 1): a(x)
    pvm(0, 3)
    for G in range(3, AHEAD):
        for x, t in wread(G): lds(x, t)
    for x in pvc(0, 2): a(x)
    for x in pvc(0, 3): a(x)
    nxt = AHEAD; opened = 0
    NG = 256
    for G in range(NG):
        pos = G // 32; J = G % 32; B = G // 8; j = G % 8
        wait_lds(('w', G))
        c = vr(A32 + (j % 4) * 16, 16)
        f = OB + (pos & 1) * 32 + (B % 4) * 8 + 4 * (j // 4)
        a(f'v_mfma_f32_32x32x16_bf16 {c}, {vr(WF+(G%NWF)*4)}, {vr(f)}, {c}')
        if opened < 15 and G == 16 * (opened + 1) - AHEAD + DELAY:
            a('s_waitcnt lgkmcnt(0)'); wait_lds.done = len(lg) - 1
            st(); a('s_barrier'); st()
            opened += 1
            a(f'v_add_u32 v{WC}, {(opened % 4) * DSLOT}, v{WB}')
        k = 0
        while nxt < NG and nxt <= G + AHEAD and nxt // 16 <= opened and k < 2:
            for x, t in wread(nxt): lds(x, t)
            nxt += 1; k += 1
        if j == 0 and B > 0:
            for x in swaps(B - 1)[:2]: a(x)
        if j == 1 and B > 0:
            for x in swaps(B - 1)[2:]: a(x)
        if J in (2, 18): a(f'v_add_u32 v{WSC}, {((G // 16) % 4) * DSLOT}, v{WS_}')
        if J in (5, 21):
            for x, t in sread(B): lds(x, t)
        if J in (10, 26):
            for x, t in sread(B): lds(x, t)
        if j == 3 and B > 0: smm(B - 1, 0)
        if j == 4 and B > 0: smm(B - 1, 1)
        if pos + 1 < 8:
            q = pos + 1
            if J == 15:
                for x, t in pread(q) + vread(q, 0)[:1]: lds(x, t)
            if J == 16:
                for x, t in vread(q, 0)[1:2]: lds(x, t)
            if J == 17:
                for x, t in vread(q, 0)[2:3]: lds(x, t)
            if J == 18:
                for x, t in vread(q, 0)[3:] + vread(q, 1)[:1]: lds(x, t)
            if J == 19:
                for x, t in vread(q, 1)[1:]: lds(x, t)
            if J == 21:
                pvm(q, 0)
                for x, t in vread(q, 2): lds(x, t)
            if J == 22:
                pvm(q, 1)
                for x, t in vread(q, 3): lds(x, t)
            if J == 23:
                for x in pvc(q, 0)[:3]: a(x)
            if J == 24:
                for x in pvc(q, 0)[3:4]: a(x)
            if J == 25:
                for x in pvc(q, 0)[4:5]: a(x)
            if J == 26:
                for x in pvc(q, 0)[5:]: a(x)
            if J == 27:
                pvm(q, 2)
                for x in pvc(q, 1)[:5]: a(x)
            if J == 29:
                for x in pvc(q, 1)[5:]: a(x)
            if J == 30:
                pvm(q, 3)
                for x in pvc(q, 2)[:4]: a(x)
            if J == 31:
                for x in pvc(q, 2)[4:7]: a(x)
        if 1 <= pos < 8:
            if J == 2:
                for x in pvc(pos, 2)[7:] + pvc(pos, 3)[:1]: a(x)
            if J == 6:
                for x in pvc(pos, 3)[1:4]: a(x)
            if J == 7:
                for x in pvc(pos, 3)[4:7]: a(x)
            if J == 11:
                for x in pvc(pos, 3)[7:]: a(x)
        if G == o.pflag_J:
            a(f's_waitcnt vmcnt(0)\nv_mov_b32 v253, s56\nv_mov_b32 v247, 0\ns_mov_b64 exec, 1')
            a('buffer_store_dword v253, v247, s[20:23], s57 offen sc1\ns_mov_b64 exec, -1')
    for x in swaps(31): a(x)
    a('s_nop 1')
    smm(31, 0); smm(31, 1)
    st()
    a('s_lshl_b32 s44, s5, 3\ns_add_u32 s44, s44, s7\ns_lshl_b32 s44, s44, 2\ns_add_u32 s44, s44, s24\ns_lshl_b32 s44, s44, 6')
    a('s_add_u32 s44, s44, s40')
    a('s_lshl_b32 s45, s6, 2\ns_add_u32 s45, s45, s44\ns_mul_i32 s45, s45, 3072')
    a(f's_add_u32 s45, s45, {X_OFF}')
    a('s_lshl_b32 s46, s6, 4\ns_add_u32 s46, s46, s44\ns_mul_i32 s46, s46, 3072')
    a(f's_add_u32 s46, s46, {X_OFF}')
    PK = 72
    for jt in range(4):
        a(f's_cmp_eq_u32 s6, {jt}\ns_cbranch_scc1 L_skip{jt}')
        for i in range(8): a(f'v_cvt_pk_bf16_f32 v{PK+8*jt+i}, v{16*jt+2*i}, v{16*jt+2*i+1}')
        a(f's_add_u32 s47, s45, {jt*16*3072}')
        for h in range(2): a(f'buffer_store_dwordx4 {vr(PK+8*jt+4*h)}, v{VL}, s[20:23], s47 offen offset:{h*1024} sc1')
        a(f'L_skip{jt}:')
    a('s_cmp_eq_u32 s6, s40\ns_cbranch_scc1 L_skip4')
    for i in range(4): a(f'v_cvt_pk_bf16_f32 v{PK+32+i}, v{A16+2*i}, v{A16+2*i+1}')
    a(f's_mul_i32 s47, s40, {16*3072}\ns_add_u32 s47, s47, s45')
    a(f'buffer_store_dwordx4 {vr(PK+32)}, v{VL}, s[20:23], s47 offen offset:2048 sc1')
    a('L_skip4:')
    OWN = 112
    for jt in range(4):
        a(f's_cmp_lg_u32 s6, {jt}\ns_cbranch_scc1 L_mv{jt}')
        for i in range(16): a(f'v_mov_b32 v{OWN+i}, v{16*jt+i}')
        a(f'L_mv{jt}:')
    a(f'''s_and_b32 s47, s2, 0xfc
s_lshl_b32 s47, s47, 2
s_add_u32 s47, s47, s40
s_lshl_b32 s47, s47, 7
s_add_u32 s47, s47, {FLAG_OFF + XFLAG}
v_lshlrev_b32 v128, 5, v{VL}       ; lane*512
v_mov_b32 v129, s56
v_mov_b32 v130, 0
s_add_u32 s57, s57, {XFLAG}''')
    st()
    a('s_waitcnt vmcnt(0)')
    st()
    a('s_mov_b64 exec, 1\nbuffer_store_dword v129, v130, s[20:23], s57 offen sc1\ns_mov_b64 exec, 15')
    a('s_mov_b32 s58, 0\ns_lshl_b32 s59, 1, s6')
    a('''L_xpoll:
buffer_load_dword v131, v128, s[20:23], s47 offen sc1
s_add_u32 s58, s58, 1
s_waitcnt vmcnt(0)
v_cmp_eq_u32 vcc, s56, v131
s_nop 1
s_or_b32 s60, vcc_lo, s59
s_cmp_eq_u32 s60, 15
s_cbranch_scc1 L_xgo
s_cmp_lt_u32 s58, 0x20000
s_cbranch_scc1 L_xpoll
L_xgo:
s_mov_b64 exec, -1''')
    st()
    RC = 132
    for k in range(1, 4):
        a(f's_add_u32 s60, s6, {k}\ns_and_b32 s60, s60, 3\ns_mul_i32 s60, s60, {4*3072}\ns_add_u32 s{60+k}, s60, s46')
        for h in range(2): a(f'buffer_load_dwordx4 {vr(RC+12*(k-1)+4*h)}, v{VL}, s[20:23], s{60+k} offen offset:{h*1024} sc1')
    a('s_cmp_lg_u32 s6, s40\ns_cbranch_scc1 L_norem0')
    for k in range(1, 4): a(f'buffer_load_dwordx4 {vr(RC+12*(k-1)+8)}, v{VL}, s[20:23], s{60+k} offen offset:2048 sc1')
    a('L_norem0:')
    a('s_mov_b32 s64, s52\ns_mov_b32 s65, s53\ns_mov_b32 s66, 2359296\ns_mov_b32 s67, 0x20000')
    a('''s_lshl_b32 s44, s7, 2
s_add_u32 s44, s44, s40
s_mul_i32 s44, s44, 73728
s_mul_i32 s45, s5, 1152
s_add_u32 s44, s44, s45
s_mul_i32 s45, s24, 288
s_add_u32 s44, s44, s45
s_lshl_b32 s45, s6, 6
s_add_u32 s45, s45, s44
s_add_u32 s46, s44, 256          ; remainder
s_add_u32 s47, s46, 36864
s_mov_b32 s58, 0xffff0000''')
    a(f'''v_lshrrev_b32 v168, 4, v{VL}       ; lane
v_and_b32 v169, 31, v168
v_mul_u32_u24 v169, 2304, v169
v_lshrrev_b32 v170, 5, v168
v_lshl_add_u32 v169, v170, 4, v169
v_and_b32 v170, 15, v168
v_mul_u32_u24 v170, 2304, v170
v_lshrrev_b32 v171, 4, v168
v_lshl_add_u32 v170, v171, 3, v170''')
    a('s_waitcnt vmcnt(0)')
    st()
    for k in range(3):
        for i in range(8):
            s = RC + 12 * k + i
            a(f'v_lshlrev_b32 v172, 16, v{s}\nv_and_b32 v173, s58, v{s}\nv_pk_add_f32 {vr(OWN+2*i,2)}, {vr(OWN+2*i,2)}, v[172:173]')
    for i in range(8): a(f'v_cvt_pk_bf16_f32 v{OWN+i}, v{OWN+2*i}, v{OWN+2*i+1}')
    a('s_nop 1')
    for h in range(2):
        a(f'v_permlane32_swap_b32 v{OWN+4*h}, v{OWN+4*h+2}\nv_permlane32_swap_b32 v{OWN+4*h+1}, v{OWN+4*h+3}')
    for h in range(2): a(f'buffer_store_dwordx4 {vr(OWN+4*h)}, v169, s[64:67], s45 offen offset:{32*h}')
    a('s_cmp_lg_u32 s6, s40\ns_cbranch_scc1 L_norem1')
    for k in range(3):
        for i in range(4):
            s = RC + 12 * k + 8 + i
            a(f'v_lshlrev_b32 v172, 16, v{s}\nv_and_b32 v173, s58, v{s}\nv_pk_add_f32 {vr(A16+2*i,2)}, {vr(A16+2*i,2)}, v[172:173]')
    for i in range(4): a(f'v_cvt_pk_bf16_f32 v{A16+i}, v{A16+2*i}, v{A16+2*i+1}')
    a(f'buffer_store_dwordx2 {vr(A16,2)}, v170, s[64:67], s46 offen\nbuffer_store_dwordx2 {vr(A16+2,2)}, v170, s[64:67], s47 offen')
    a('L_norem1:')
    if o.stamp:
        st(); a('s_waitcnt vmcnt(0)'); st(); st(True); st.flush()
    if o.amp:
        a(f'''s_waitcnt vmcnt(0)
s_memrealtime s[82:83]
s_waitcnt lgkmcnt(0)
s_sub_u32 s84, s82, s80
s_mul_i32 s84, s84, {o.amp}
L_amp:
s_memrealtime s[80:81]
s_waitcnt lgkmcnt(0)
s_sub_u32 s85, s80, s82
s_cmp_lt_u32 s85, s84
s_cbranch_scc1 L_amp''')
    a('s_endpgm')

    a('L_prod:')
    st.n = 2
    VX = 2; VW = 6; VK = 10; VV = 14; VO = 15; VLp = 20; PARK = 32
    a('s_sub_u32 s41, s40, 4          ; p')
    a('s_mul_i32 s44, s7, %d' % (128 * 1152)); srd(a, 8, 28, 44, 1179648)
    a('s_lshl_b32 s44, s43, 8'); srd(a, 12, 34, 44, 4718592)
    a('v_lshrrev_b32 v24, 3, v0\nv_lshrrev_b32 v25, 4, v0\nv_and_b32 v26, 7, v0')
    a('s_mul_i32 s42, s41, %d' % (32 * 1152))
    for i in range(4):
        a(f'v_xor_b32 v27, {4*(i&1)}, v25\nv_xor_b32 v27, v27, v26\nv_lshlrev_b32 v27, 4, v27')
        a(f'v_add_u32 v28, {8*i}, v24\nv_mul_u32_u24 v28, 1152, v28\nv_add_u32 v27, v27, v28')
        a(f'v_add_u32 v27, s42, v27\nv_subrev_u32 v{VX+i}, {1024*i}, v27')
    a('v_lshrrev_b32 v24, 5, v0\nv_and_b32 v26, 31, v0')
    a('s_lshl_b32 s42, s41, 16')
    for i in range(4):
        a(f'v_add_u32 v28, {2*i}, v24\nv_and_b32 v27, 3, v28\nv_lshlrev_b32 v27, 2, v27\nv_xor_b32 v27, v27, v26\nv_lshlrev_b32 v27, 4, v27')
        a(f'v_lshl_add_u32 v27, v28, 13, v27\nv_add_u32 v27, s42, v27\nv_subrev_u32 v{VW+i}, {1024*i}, v27')
    a('s_lshl_b32 s42, s41, 12         ; p*4096 lds')
    if o.rot1:
        a('s_lshl_b32 s46, s24, 1\ns_add_u32 s46, s46, s7\ns_sub_u32 s47, s46, 9\ns_cmp_ge_u32 s46, 9\ns_cselect_b32 s46, s47, s46')
    else:
        a('s_mov_b32 s46, 0')
    a('s_mov_b32 s47, s46')
    vm = VM()
    def adv(s): a(f's_add_u32 s{s}, s{s}, 1\ns_cmp_eq_u32 s{s}, 9\ns_cselect_b32 s{s}, 0, s{s}')
    def ldX(pos):
        a(f's_add_u32 m0, s42, {XR_BASE + (pos % 2) * 16384}')
        a('s_lshl_b32 s44, s46, 7')
        for i in range(4): a(f'buffer_load_dwordx4 v{VX+i}, s[8:11], s44 offen offset:{1024*i}{nt(o.nt_x)} lds')
        adv(46)
        vm.add(('X', pos), 4)
    def ldW(t):
        a(f's_add_u32 m0, s42, {((t + 2) % 4) * 16384}')
        a('s_lshl_b32 s44, s47, 19')
        if t % 2: a('s_add_u32 s44, s44, 262144')
        for i in range(4): a(f'buffer_load_dwordx4 v{VW+i}, s[12:15], s44 offen offset:{1024*i}{nt(o.nt_wq)} lds')
        if t % 2: adv(47)
        vm.add(('W', t), 4)
    ldX(0); ldW(0); ldW(1)
    a('s_lshl_b32 s44, s7, 7\ns_add_u32 s44, s44, s43\ns_lshl_b32 s44, s44, 13'); srd(a, 16, 30, 44, 8388608)
    a('s_lshl_b32 s44, s7, 7\ns_lshl_b32 s45, s6, 3\ns_add_u32 s44, s44, s45\ns_lshl_b32 s44, s44, 13'); srd(a, 60, 32, 44, 8388608)
    a('s_mul_i32 s44, s6, %d\ns_mul_i32 s45, s24, 288\ns_add_u32 s44, s44, s45\ns_cmp_eq_u32 s24, 3\ns_cselect_b32 s45, 32, 0\ns_sub_u32 s44, s44, s45' % (1024 * 1152))
    srd(a, 56, 36, 44, 4718592)
    a('v_and_b32 v26, 15, v0\nv_xor_b32 v27, v26, v25')
    for i in range(4):
        a(f'v_xor_b32 v28, {4*i}, v27\nv_lshlrev_b32 v28, 4, v28\nv_lshl_add_u32 v{VK+i}, v25, 8, v28')
    a(f'v_lshlrev_b32 v28, 2, v25\nv_xor_b32 v28, v28, v26\nv_lshlrev_b32 v28, 4, v28\nv_lshl_add_u32 v{VV}, v25, 8, v28')
    a('s_mul_i32 s44, s41, 320')
    for i in range(5):
        a(f'v_add_u32 v26, {64*i}, v0\nv_add_u32 v26, s44, v26\nv_mul_u32_u24 v27, 3277, v26\nv_lshrrev_b32 v27, 16, v27')
        a(f'v_mul_u32_u24 v28, 20, v27\nv_sub_u32 v26, v26, v28\nv_mul_u32_u24 v27, 1152, v27\nv_lshl_add_u32 v27, v26, 4, v27')
        a(f'v_subrev_u32 v{VO+i}, {1024*(i%4)}, v27')
    a(f'v_lshlrev_b32 v{VLp}, 4, v0')
    a('s_and_b32 s44, s41, 1\ns_lshl_b32 s44, s44, 19\ns_lshr_b32 s45, s41, 1\ns_lshl_b32 s45, s45, 13\ns_add_u32 s50, s44, s45')
    a(f's_lshl_b32 s51, s41, 14\ns_add_u32 s51, s51, {R_BASE}')
    a('s_lshl_b32 s44, s24, 1\ns_add_u32 s64, s44, s49\ns_xor_b32 s65, s64, 1')
    a('s_sub_u32 s44, s7, 6\ns_cmp_ge_u32 s7, 6\ns_cselect_b32 s66, s44, s7')
    for i in range(6):
        a(f's_lshl_b32 s44, s24, 1\ns_add_u32 s44, s44, s66\ns_add_u32 s44, s44, 2\ns_and_b32 s{82+i}, s44, 7')
        if i < 5: a('s_add_u32 s66, s66, 1\ns_cmp_eq_u32 s66, 6\ns_cselect_b32 s66, 0, s66')
    HS = {0: 64, 1: 65}; HS.update({2 + i: 82 + i for i in range(6)})
    a('s_lshl_b32 s67, s41, 18         ; p*262144 (V batch)')
    a(f's_lshl_b32 s68, s41, 13\ns_add_u32 s68, s68, {R_BASE}     ; V lds')
    a('s_mul_i32 s69, s41, 5120')
    a(f's_lshl_b32 s70, s41, 11\ns_add_u32 s70, s70, {PRING}      ; P lds')
    a('s_lshl_b32 s71, s41, 16\ns_add_u32 s71, s71, s48')
    a(f's_lshl_b32 s74, s2, 9\ns_add_u32 s74, s74, {FLAG_OFF}')
    a('s_mov_b32 s88, s54\ns_mov_b32 s89, s55\ns_mov_b32 s90, 256\ns_mov_b32 s91, 0x20000')
    a('s_lshl_b32 s75, s5, 3\ns_add_u32 s75, s75, s7\ns_lshl_b32 s75, s75, 4')
    a('v_mov_b32 v21, 0')
    def ldK(mt):
        for g in range(2):
            a(f's_add_u32 m0, s51, {mt*8192+g*4096}')
            a(f's_add_u32 s44, s50, {mt*262144+g*4096}')
            for i in range(4): a(f'buffer_load_dwordx4 v{VK+i}, s[16:19], s44 offen offset:{1024*i}{nt(o.nt_k)} lds')
        vm.add(('K', mt), 8)
    def ldVpark(pos):
        a(f's_lshl_b32 s44, s{HS[pos]}, 13\ns_add_u32 s44, s44, s67\ns_add_u32 s45, s44, 4096')
        for i in range(8): a(f'buffer_load_dwordx4 {vr(PARK+pos*32+4*i)}, v{VV}, s[60:63], s{44+i//4} offen offset:{1024*(i%4)}{nt(o.nt_v)}')
        vm.add(('VP', pos), 8)
    def ldWo(u):
        a(f's_mul_i32 s44, s{HS[u//2]}, {128*1152}')
        if u % 2: a(f's_add_u32 s44, s44, {64*1152}')
        a(f's_add_u32 m0, s69, {(u % 4) * DSLOT}\ns_nop 0')
        for i in range(4): a(f'buffer_load_dwordx4 v{VO+i}, s[56:59], s44 offen offset:{1024*i}{nt(o.nt_wo)} lds')
        a(f's_add_u32 m0, s69, {(u % 4) * DSLOT + 4096}\ns_nop 0')
        a(f'buffer_load_dwordx4 v{VO+4}, s[56:59], s44 offen{nt(o.nt_wo)} lds')
        vm.add(('O', u), 5)
    def ldV(pos):
        a(f's_lshl_b32 s44, s{HS[pos]}, 13\ns_add_u32 s44, s44, s67')
        for g in range(2):
            a(f's_add_u32 m0, s68, {(pos & 1) * 32768 + g * 4096}')
            a('s_add_u32 s44, s44, 4096' if g else 's_nop 0')
            for i in range(4): a(f'buffer_load_dwordx4 v{VV}, s[60:63], s44 offen offset:{1024*i}{nt(o.nt_v)} lds')
        vm.add(('V', pos), 8)
    def ldP(pos):
        a(f's_add_u32 m0, s70, {(pos & 1) * 8192}')
        a(f's_lshl_b32 s44, s{HS[pos]}, 11\ns_add_u32 s44, s44, s71')
        for i in range(2): a(f'buffer_load_dwordx4 v{VLp}, s[20:23], s44 offen offset:{1024*i} sc1 lds')
        vm.add(('P', pos), 2)
    def wait(tags):
        n = vm.wait_for(tags)
        st()
        if n is not None: a(f's_waitcnt vmcnt({n})')
        st()
    ncls = len(o.runs)
    if ncls > 1:
        a('s_xor_b32 s44, s7, s24\ns_and_b32 s44, s44, 1\ns_cmp_eq_u32 s44, 1\ns_cbranch_scc1 L_cls1')
    pre_ops = list(vm.ops); n0 = st.n
    for cls in range(ncls):
        if cls: a(f'L_cls{cls}:')
        vm.ops = list(pre_ops); st.n = n0
        runs = o.runs[cls]
        for t in range(-1, 18):
            tags = {('W', t + 1), ('X', (t + 1) // 2)}
            if t == 15: tags |= {('K', 0), ('K', 1)}
            if t in (16, 17): a('s_waitcnt lgkmcnt(0)')
            wait(tags if t < 17 else set())
            a('s_barrier')
            if t == -1:
                ldX(1); ldW(2); ldW(3)
                a('s_mov_b64 exec, 1\nbuffer_load_dword v22, v21, s[20:23], s74 offen sc1\ns_mov_b64 exec, -1'); vm.add('N0')
            elif t + 4 <= 17: ldW(t + 4)
            if t >= 0 and t % 2 == 1 and (t - 1) // 2 + 2 <= 8: ldX((t - 1) // 2 + 2)
            if t == 2:
                a(f's_waitcnt vmcnt({vm.wait_for({"N0"})})')
                a('v_add_u32 v22, 1, v22\nv_max_u32 v22, 1, v22\nv_mov_b32 v23, 0\nv_mov_b32 v24, v22')
                a('s_cmp_eq_u32 s41, 0\ns_cselect_b32 s44, s75, 0x1000\ns_mov_b64 exec, 1')
                a('buffer_atomic_cmpswap v[22:23], v21, s[88:91], s44 offen sc0\ns_mov_b64 exec, -1'); vm.add('N1')
            if t == 15:
                a(f's_waitcnt vmcnt({vm.wait_for({"N1"})})')
                a(f'v_cmp_eq_u32 vcc, 0, v22\nv_mov_b32 v23, {PRING}\ns_nop 0\nv_cndmask_b32 v22, v22, v24, vcc')
                a('s_cmp_lg_u32 s41, 0\ns_cbranch_scc1 L_nn%d\ns_mov_b64 exec, 1\nds_write_b32 v23, v22\ns_mov_b64 exec, -1\nL_nn%d:' % (cls, cls))
                ldWo(0)
            if t == 16:
                a(f'ds_read_b32 v22, v23')
            if t in runs:
                r = runs[t]
                (ldK if r[0] == 'K' else ldVpark)(int(r[1]))
        a('v_readfirstlane_b32 s75, v22     ; nonce')
        ldWo(1); ldWo(2); ldWo(3)
        a(f'v_add_u32 v21, s68, v{VLp}')
        for pos in range(2):
            wait({('VP', pos)})
            for i in range(8): a(f'ds_write_b128 v21, {vr(PARK+pos*32+4*i)} offset:{pos*32768+i*1024}')
        wait({('O', 0)})
        a('s_waitcnt lgkmcnt(0)')
        a('s_barrier')
        if cls + 1 < ncls: a('s_branch L_ph2')
    a('L_ph2:')
    vm.ops = [('O', 1)] * 5 + [('O', 2)] * 5 + [('O', 3)] * 5
    a(f'''v_lshrrev_b32 v22, 2, v0
v_lshlrev_b32 v22, 12, v22
v_and_b32 v23, 3, v0
v_lshl_add_u32 v22, v23, 7, v22
s_andn2_b32 s74, s2, 0x18
s_lshl_b32 s74, s74, 9
s_add_u32 s74, s74, {FLAG_OFF}''')
    for u in range(15):
        tags = {('O', u + 1)}
        if u % 2 == 0 and 2 <= u // 2 + 1 <= 7: tags |= {('V', u // 2 + 1), ('P', u // 2 + 1)}
        wait(tags)
        a('s_barrier')
        if u == 1:
            a('s_mov_b64 exec, 0xffff\nbuffer_load_dword v23, v22, s[20:23], s74 offen sc1\ns_mov_b64 exec, -1'); vm.add('F')
        if u + 4 <= 15: ldWo(u + 4)
        if u == 0: ldV(2)
        if u % 2 == 1 and (u - 1) // 2 + 3 <= 7: ldV((u - 1) // 2 + 3)
        if u == 1:
            a(f's_mov_b32 s45, 0\ns_waitcnt vmcnt({vm.wait_for({"F"})})')
            a('''L_ppoll:
s_mov_b64 exec, 0xffff
v_cmp_eq_u32 vcc, s75, v23
s_add_u32 s45, s45, 1
s_nop 0
s_cmp_eq_u32 vcc_lo, 0xffff
s_cbranch_scc1 L_pgo
buffer_load_dword v23, v22, s[20:23], s74 offen sc1
s_waitcnt vmcnt(0)
s_cmp_lt_u32 s45, 0x20000
s_cbranch_scc1 L_ppoll
L_pgo:
s_mov_b64 exec, -1''')
            st()
            ldP(2)
        if u % 2 == 1 and (u - 1) // 2 + 3 <= 7: ldP((u - 1) // 2 + 3)
    if o.stamp: st(True); st.flush()
    a('L_end:\ns_endpgm')
    a('.section .rodata,"a"')
    a(kd(name, 256))
    return a.text()

if __name__ == '__main__':
    t = gen()
    e = hazard.check(t)
    print(len(e), 'hazards'); print('\n'.join(e[:40]))
    open(sys.argv[1], 'w').write(t)
```

```python
import sys
from asm import *
import hazard

P_OFF = 0
FLAG_OFF = 4 << 20
XFLAG = 1 << 17
X_OFF = 8 << 20
WS_SIZE = 32 << 20
STAMP_OFF = 64 << 20
CEXP = 0x3e0293ee
R_BASE = 98304; PRING = 81920; XR_BASE = 65536; DSLOT = 20480

class Opt:
    nt_k = False; nt_v = False; nt_wq = False; nt_wo = False; nt_x = False
    stamp = False
    rot1 = True
    runs = [{1: 'K0', 5: 'K1', 9: 'V0', 13: 'V1'}, {3: 'K0', 7: 'K1', 11: 'V0', 14: 'V1'}]
    pflag_J = 30
    amp = 0
    post_c1 = ['V0', 'V1']
    post_c2 = ['O2', 'O3']

def nt(b): return ' nt' if b else ''
def vr(b, n=4): return f'v[{b}:{b+n-1}]'

class Stamper:
    def __init__(self, a, on): self.a = a; self.on = on; self.n = 0
    def __call__(self, rt=False, lvl=2):
        if self.on < lvl: return
        a = self.a
        a('s_memrealtime s[72:73]' if rt else 's_memtime s[72:73]')
        a('s_waitcnt lgkmcnt(0)')
        a(f'v_writelane_b32 v{255 - self.n // 64}, s72, {self.n % 64}')
        self.n += 1
        assert self.n <= 127
    def flush(self):
        if not self.on: return
        a = self.a
        a('s_mov_b32 s76, s38\ns_mov_b32 s77, s39\ns_mov_b32 s78, 0x10000000\ns_mov_b32 s79, 0x20000')
        a(f's_lshl_b32 s72, s2, 3\ns_add_u32 s72, s72, s40\ns_lshl_b32 s72, s72, 9\ns_add_u32 s72, s72, {STAMP_OFF}')
        a('v_mbcnt_lo_u32_b32 v253, -1, 0\nv_mbcnt_hi_u32_b32 v253, -1, v253\nv_lshlrev_b32 v253, 2, v253')
        a('buffer_store_dword v255, v253, s[76:79], s72 offen\nbuffer_store_dword v254, v253, s[76:79], s72 offen offset:256')

class VM:
    def __init__(self): self.ops = []
    def add(self, tag, n=1): self.ops += [tag] * n
    def wait_for(self, tags):
        last = -1
        for i, t in enumerate(self.ops):
            if t in tags: last = i
        if last < 0: return None
        n = len(self.ops) - 1 - last
        return min(n, 63)

def srd(a, d, base, off_s, size):
    a(f's_add_u32 s{d}, s{base}, s{off_s}')
    a(f's_addc_u32 s{d+1}, s{base+1}, 0')
    a(f's_sub_u32 s{d+2}, {size}, s{off_s}')
    a(f's_mov_b32 s{d+3}, 0x20000')

def gen(o=Opt):
    a = A()
    name = KN + '_kernel'
    a('; @launch grid=(256,1,1) block=(512,1,1) lds=163840')
    a('.amdgcn_target "amdgcn-amd-amdhsa--gfx950"\n.text')
    a(head(name))
    a('''s_cmp_ge_u32 s2, 256
s_cbranch_scc1 L_end
s_and_b32 s3, s2, 7
s_lshr_b32 s4, s2, 3
s_lshr_b32 s5, s3, 2          ; branch
s_mul_i32 s25, s5, 40
s_add_u32 s26, s0, s25
s_addc_u32 s27, s1, 0
s_load_dwordx8 s[28:35], s[26:27], 0     ; x k v wq
s_load_dwordx2 s[36:37], s[26:27], 32    ; wo
s_load_dwordx4 s[52:55], s[0:1], 80
s_load_dwordx2 s[38:39], s[0:1], 96      ; ws
s_and_b32 s6, s3, 3           ; hg
s_lshr_b32 s7, s4, 2          ; bg
s_and_b32 s24, s4, 3          ; sub
v_lshrrev_b32 v1, 6, v0
v_and_b32 v0, 63, v0
v_readfirstlane_b32 s40, v1''')
    st = Stamper(a, int(o.stamp)); st(True, 1); st(lvl=1)
    c1 = lambda: st(lvl=1)
    if o.amp: a('s_memrealtime s[80:81]')
    a('s_lshl_b32 s41, s6, 3\ns_lshl_b32 s42, s24, 1\ns_add_u32 s43, s41, s42')
    a('s_waitcnt lgkmcnt(0)')
    a(f's_mov_b32 s20, s38\ns_mov_b32 s21, s39\ns_mov_b32 s22, {WS_SIZE}\ns_mov_b32 s23, 0x20000')
    a('s_lshl_b32 s48, s5, 5\ns_lshl_b32 s42, s7, 2\ns_add_u32 s48, s48, s42\ns_lshl_b32 s48, s48, 5\ns_add_u32 s48, s48, s41\ns_lshl_b32 s48, s48, 11')
    if P_OFF: a(f's_add_u32 s48, s48, {P_OFF}')
    a('s_and_b32 s49, s7, 1')
    a('s_cmp_ge_u32 s40, 4\ns_cbranch_scc1 L_prod')

    ACC = 0; FB = 128; WA = 176; XA = 180; KR = 184
    VL = 248; KB = 249; WB = 250; WS_ = 251; VB = 252
    VT = 247
    a('s_and_b32 s41, s40, 1          ; mb\ns_lshr_b32 s42, s40, 1         ; hs')
    a('''v_lshrrev_b32 v1, 5, v0          ; hf
v_bfe_u32 v2, v0, 2, 2           ; r
v_and_b32 v3, 3, v0              ; c
v_bfe_u32 v4, v0, 4, 1           ; G&1
v_lshlrev_b32 v5, 3, v1
v_add_u32 v5, v5, v2
v_lshlrev_b32 v5, 9, v5          ; (8hf+r)*512
v_and_b32 v6, 1, v3
v_lshl_add_u32 v6, v4, 1, v6     ; cc
v_lshlrev_b32 v6, 4, v6
v_lshrrev_b32 v7, 1, v3
v_lshl_add_u32 v6, v7, 3, v6
v_add_u32 v5, v5, v6
s_lshl_b32 s44, s42, 8
v_add_u32 v5, s44, v5''')
    for n_ in range(4):
        a(f'v_xor_b32 v7, {n_}, v2\nv_lshl_add_u32 v{WA+n_}, v7, 6, v5')
    a('s_cmp_eq_u32 s24, 3\ns_cselect_b32 s44, 32, 0')
    a(f'''v_lshl_add_u32 v5, v1, 2, v2     ; 4hf+r
v_mul_u32_u24 v6, 320, v5
v_lshl_add_u32 v6, v4, 5, v6
v_lshl_add_u32 v6, v3, 3, v6
v_add_u32 v{WB}, s44, v6
v_lshl_add_u32 v6, v4, 4, v5     ; 16(G&1)+4hf+r
v_mul_u32_u24 v6, 320, v6
v_lshl_add_u32 v6, v3, 3, v6
s_add_u32 s44, s44, 256
v_add_u32 v{WS_}, s44, v6
v_lshlrev_b32 v6, 8, v5          ; key*256
v_lshl_add_u32 v6, v2, 6, v6     ; + r*64
v_lshl_add_u32 v6, v4, 5, v6     ; + (G&1)*32
v_lshl_add_u32 v6, v3, 3, v6     ; + c*8  ((c>>1)*16 + (c&1)*8)
s_lshl_b32 s44, s40, 13''')
    a(f's_add_u32 s44, s44, {R_BASE}\nv_add_u32 v{VB}, s44, v6')
    a('''v_and_b32 v2, 31, v0             ; m
v_bfe_u32 v3, v0, 1, 3           ; (m>>1)&7
v_xor_b32 v3, v3, v1
v_lshlrev_b32 v3, 4, v3
v_lshl_add_u32 v3, v2, 7, v3
s_lshl_b32 s44, s41, 13''')
    a(f's_add_u32 s44, s44, {XR_BASE}\nv_add_u32 v3, s44, v3')
    for s_ in range(4): a(f'v_xor_b32 v{XA+s_}, {32*s_}, v3')
    a(f'v_lshlrev_b32 v{VL}, 4, v0')
    a(f'''v_and_b32 v4, 15, v0
v_xor_b32 v4, v4, v1
v_lshlrev_b32 v4, 4, v4
v_lshl_add_u32 v4, v2, 8, v4
s_lshl_b32 s44, s40, 14
s_add_u32 s44, s44, {R_BASE}
v_add_u32 v{KB}, s44, v4''')
    a('s_lshl_b32 s45, s41, 17\ns_lshl_b32 s44, s24, 1\ns_add_u32 s44, s44, s42\ns_lshl_b32 s44, s44, 11\ns_add_u32 s50, s45, s44\ns_add_u32 s50, s50, s48\ns_add_u32 s51, s50, 65536')
    a(f's_xor_b32 s44, s42, s49\ns_lshl_b32 s44, s44, 13\ns_lshl_b32 s45, s41, 12\ns_add_u32 s46, s44, s45\ns_add_u32 s46, s46, {PRING}')
    a(f's_lshl_b32 s57, s2, 2\ns_add_u32 s57, s57, s40\ns_lshl_b32 s57, s57, 7\ns_add_u32 s57, s57, {FLAG_OFF}')
    def reads(ks):
        t = ks // 2; ksub = ks % 2; buf = FB + (ks & 1) * 24
        wimm = ((t + 2) % 4) * 16384
        xs = (ks // 4) % 2
        r = []
        for mt in range(2):
            r.append(f'ds_read_b128 {vr(buf+16+4*mt)}, v{XA+ks%4} offset:{xs*16384+mt*4096}')
        for n_ in range(4):
            for u in range(2):
                r.append(f'ds_read_b64_tr_b16 {vr(buf+4*n_+2*u,2)}, v{WA+n_} offset:{wimm+(16*ksub+4*u)*512}')
        return [r[0], r[2], r[3], r[1]] + r[4:]
    st(); a('s_barrier'); c1()
    for x in reads(0): a(x)
    a('s_waitcnt lgkmcnt(0)')
    kq = [(mt, s_) for s_ in range(8) for mt in range(2)]
    for ks in range(36):
        buf = FB + (ks & 1) * 24
        fill = []
        if ks + 1 < 36: fill += reads(ks + 1)
        if 31 <= ks <= 34:
            for _ in range(4):
                mt, s_ = kq.pop(0)
                if mt == 0: fill.append(f'v_xor_b32 v253, {32*s_}, v{KB}')
                fill.append(f'ds_read_b128 {vr(KR+(mt*8+s_)*4)}, v253 offset:{mt*8192}')
        if ks == 33:
            fill.append(f'v_mov_b32 v{XA}, {PRING}')
            fill.append(f'ds_read_b32 v{XA+1}, v{XA}')
        m = []
        for n_ in range(4):
            for mt in range(2):
                c = ACC + (mt * 4 + n_) * 16
                m.append(f'v_mfma_f32_32x32x16_bf16 {vr(c,16)}, {vr(buf+4*n_)}, {vr(buf+16+4*mt)}, {vr(c,16) if ks else 0}')
        per = -(-len(fill) // 6) if fill else 0
        for i, mm in enumerate(m):
            a(mm)
            for x in fill[i*per:(i+1)*per]: a(x)
        if ks < 35: a('s_waitcnt lgkmcnt(0)')
        if ks % 2 == 0: st(); a('s_barrier'); st()
        if ks == 34: a(f'v_readfirstlane_b32 s56, v{XA+1}       ; nonce')
    c1()
    S = [FB, FB + 16]
    def cvts(n_):
        r = []
        for mt in range(2):
            c = ACC + (mt * 4 + n_) * 16
            r += [f'v_cvt_pk_bf16_f32 v{c+i}, v{c+2*i}, v{c+2*i+1}' for i in range(8)]
        return r
    a('s_nop 4')
    for x in cvts(0): a(x)
    for n_ in range(4):
        nx = cvts(n_ + 1) if n_ < 3 else []
        k = 0
        for sp in range(2):
            for mt in range(2):
                c = ACC + (mt * 4 + n_) * 16 + 4 * sp
                src = '0' if (n_ == 0 and sp == 0) else vr(S[mt], 16)
                a(f'v_mfma_f32_32x32x16_bf16 {vr(S[mt],16)}, {vr(KR+(mt*8+2*n_+sp)*4)}, {vr(c)}, {src}')
                for x in nx[4*k:4*k+4]: a(x)
                k += 1
    a(f's_mov_b32 s44, {hex(CEXP)}\ns_mov_b32 s45, {hex(CEXP)}')
    a(f'v_add_u32 v8, s46, v{VL}')
    a('s_nop 8')
    c1()
    M = [0, 4]
    for i in (0, 3, 5, 7, 9, 11, 13, 15):
        for mt in range(2):
            s = S[mt]; t = M[mt]
            if i == 0: a(f'v_max3_f32 v{t}, v{s}, v{s+1}, v{s+2}')
            elif i < 15: a(f'v_max3_f32 v{t}, v{t}, v{s+i}, v{s+i+1}')
            else: a(f'v_max_f32 v{t}, v{t}, v{s+15}')
    for mt in range(2): a(f'v_mov_b32 v{M[mt]+1}, v{M[mt]}')
    a('s_nop 0')
    for mt in range(2): a(f'v_permlane32_swap_b32 v{M[mt]}, v{M[mt]+1}')
    a('s_nop 0')
    for mt in range(2): a(f'v_max_f32 v{M[mt]}, v{M[mt]}, v{M[mt]+1}')
    for mt in range(2): a(f'v_mul_f32 v{M[mt]}, s44, v{M[mt]}')
    for mt in range(2):
        s = S[mt]; t = M[mt]
        for i in range(0, 16, 2): a(f'v_pk_fma_f32 {vr(s+i,2)}, {vr(s+i,2)}, s[44:45], {vr(t,2)} op_sel_hi:[1,0,0] neg_lo:[0,0,1] neg_hi:[0,0,1]')
        for i in range(16): a(f'v_exp_f32 v{s+i}, v{s+i}')
    for i in range(0, 16, 2):
        for mt in range(2):
            s = S[mt]; t = M[mt]
            if i == 0: continue
            if i == 2: a(f'v_pk_add_f32 {vr(t,2)}, {vr(s,2)}, {vr(s+2,2)}')
            else: a(f'v_pk_add_f32 {vr(t,2)}, {vr(t,2)}, {vr(s+i,2)}')
    for mt in range(2): a(f'v_add_f32 v{M[mt]}, v{M[mt]}, v{M[mt]+1}')
    for mt in range(2): a(f'v_mov_b32 v{M[mt]+1}, v{M[mt]}')
    a('s_nop 0')
    for mt in range(2): a(f'v_permlane32_swap_b32 v{M[mt]}, v{M[mt]+1}')
    a('s_nop 0')
    for mt in range(2): a(f'v_add_f32 v{M[mt]}, v{M[mt]}, v{M[mt]+1}')
    for mt in range(2): a(f'v_rcp_f32 v{M[mt]}, v{M[mt]}')
    for mt in range(2):
        s = S[mt]; t = M[mt]
        if mt == 0: a('s_nop 0')
        for i in range(0, 16, 2): a(f'v_pk_mul_f32 {vr(s+i,2)}, {vr(s+i,2)}, {vr(t,2)} op_sel_hi:[1,0]')
        for i in range(8): a(f'v_cvt_pk_bf16_f32 v{s+i}, v{s+2*i}, v{s+2*i+1}')
        for sp in range(2):
            a(f'buffer_store_dwordx4 {vr(s+4*sp)}, v{VL}, s[20:23], s{50+mt} offen offset:{sp*1024} sc1')
            a(f'ds_write_b128 v8, {vr(s+4*sp)} offset:{mt*2048+sp*1024}')
    A32 = 0; A16 = 64; OB = 72; PV = 160; WF = 192; SF = 224; VF = 136; PF = 232; VA = 240; WC = 244; WSC = 245; PA = 246
    NWF = 8; AHEAD = 7; DELAY = 3
    for t in range(4): a(f'v_xor_b32 v{VA+t}, {64*t}, v{VB}')
    a(f's_lshl_b32 s44, s40, 11\ns_add_u32 s44, s44, {PRING}\nv_add_u32 v{PA}, s44, v{VL}')
    a(f'v_mov_b32 v{WC}, v{WB}\nv_mov_b32 v{WSC}, v{WS_}')
    a('s_waitcnt lgkmcnt(0)')
    c1(); a('s_barrier'); c1()
    lg = []
    def lds(x, tag): a(x); lg.append(tag)
    def wait_lds(*tags):
        last = max(j for j, t in enumerate(lg) if t in tags)
        n = min(15, len(lg) - 1 - last)
        if wait_lds.done >= last: return
        a(f's_waitcnt lgkmcnt({n})'); wait_lds.done = len(lg) - 1 - n
    wait_lds.done = -1
    def pread(pos): return [(f'ds_read_b128 {vr(PF+4*s_)}, v{PA} offset:{(pos&1)*8192+s_*1024}', ('p', pos)) for s_ in range(2)]
    def vread(pos, t): return [(f'ds_read_b64_tr_b16 {vr(VF+(t&1)*8+4*s_+2*u,2)}, v{VA+t} offset:{(pos&1)*32768+(16*s_+8*u)*256}', ('v', pos, t)) for s_ in range(2) for u in range(2)]
    def pvm(pos, t):
        wait_lds(('p', pos), ('v', pos, t))
        c = vr(PV + (t & 1) * 16, 16)
        a(f'v_mfma_f32_32x32x16_bf16 {c}, {vr(VF+(t&1)*8)}, {vr(PF)}, 0')
        a(f'v_mfma_f32_32x32x16_bf16 {c}, {vr(VF+(t&1)*8+4)}, {vr(PF+4)}, {c}')
    def pvc(pos, t):
        s = PV + (t & 1) * 16; d = OB + (pos & 1) * 32 + t * 8
        return [f'v_cvt_pk_bf16_f32 v{d+i}, v{s+2*i}, v{s+2*i+1}' for i in range(8)]
    def wread(G):
        j = G % 8; b = (G // 8) % 2
        row = 32 * b + 16 * (j // 4)
        return [(f'ds_read_b64_tr_b16 {vr(WF+(G%NWF)*4+2*u,2)}, v{WC} offset:{(row+8*u)*320+(j%4)*64}', ('w', G)) for u in range(2)]
    def sread(B):
        return [(f'ds_read_b64_tr_b16 {vr(SF+(B&1)*4+2*u,2)}, v{WSC} offset:{(32*(B&1)+8*u)*320}', ('s', B)) for u in range(2)]
    def swaps(B):
        f = OB + ((B // 4) & 1) * 32 + (B % 4) * 8
        return [f'v_permlane16_swap_b32 v{f+i}, v{f+4+i}' for i in range(4)]
    def smm(B, qt):
        wait_lds(('s', B))
        f = OB + ((B // 4) & 1) * 32 + (B % 4) * 8 + 4 * qt
        c = vr(A16 + 4 * qt)
        a(f'v_mfma_f32_16x16x32_bf16 {c}, {vr(SF+(B&1)*4)}, {vr(f)}, {c if B else 0}')
    for x, t in pread(0) + vread(0, 0) + vread(0, 1): lds(x, t)
    pvm(0, 0)
    for x, t in vread(0, 2): lds(x, t)
    pvm(0, 1)
    for x, t in vread(0, 3): lds(x, t)
    a('s_nop 1')
    for x in pvc(0, 0): a(x)
    pvm(0, 2)
    for G in range(3):
        for x, t in wread(G): lds(x, t)
    for x in pvc(0, 1): a(x)
    pvm(0, 3)
    for G in range(3, AHEAD):
        for x, t in wread(G): lds(x, t)
    for x in pvc(0, 2): a(x)
    for x in pvc(0, 3): a(x)
    nxt = AHEAD; opened = 0
    NG = 256
    for G in range(NG):
        pos = G // 32; J = G % 32; B = G // 8; j = G % 8
        wait_lds(('w', G))
        c = vr(A32 + (j % 4) * 16, 16)
        f = OB + (pos & 1) * 32 + (B % 4) * 8 + 4 * (j // 4)
        a(f'v_mfma_f32_32x32x16_bf16 {c}, {vr(WF+(G%NWF)*4)}, {vr(f)}, {c if G >= 4 else 0}')
        if opened < 15 and G == 16 * (opened + 1) - AHEAD + DELAY:
            a('s_waitcnt lgkmcnt(0)'); wait_lds.done = len(lg) - 1
            (c1 if opened in (2,) else st)(); a('s_barrier'); (c1 if opened in (2,) else st)()
            opened += 1
            a(f'v_add_u32 v{WC}, {(opened % 4) * DSLOT}, v{WB}')
        k = 0
        while nxt < NG and nxt <= G + AHEAD and nxt // 16 <= opened and k < 2:
            for x, t in wread(nxt): lds(x, t)
            nxt += 1; k += 1
        if j == 0 and B > 0:
            for x in swaps(B - 1)[:2]: a(x)
        if j == 1 and B > 0:
            for x in swaps(B - 1)[2:]: a(x)
        if J in (2, 18): a(f'v_add_u32 v{WSC}, {((G // 16) % 4) * DSLOT}, v{WS_}')
        if J in (5, 21):
            for x, t in sread(B): lds(x, t)
        if J in (10, 26):
            for x, t in sread(B): lds(x, t)
        if j == 3 and B > 0: smm(B - 1, 0)
        if j == 4 and B > 0: smm(B - 1, 1)
        if pos + 1 < 8:
            q = pos + 1
            if J == 15:
                for x, t in pread(q) + vread(q, 0)[:1]: lds(x, t)
            if J == 16:
                for x, t in vread(q, 0)[1:2]: lds(x, t)
            if J == 17:
                for x, t in vread(q, 0)[2:3]: lds(x, t)
            if J == 18:
                for x, t in vread(q, 0)[3:] + vread(q, 1)[:1]: lds(x, t)
            if J == 19:
                for x, t in vread(q, 1)[1:]: lds(x, t)
            if J == 21:
                pvm(q, 0)
                for x, t in vread(q, 2): lds(x, t)
            if J == 22:
                pvm(q, 1)
                for x, t in vread(q, 3): lds(x, t)
            if J == 23:
                for x in pvc(q, 0)[:3]: a(x)
            if J == 24:
                for x in pvc(q, 0)[3:4]: a(x)
            if J == 25:
                for x in pvc(q, 0)[4:5]: a(x)
            if J == 26:
                for x in pvc(q, 0)[5:]: a(x)
            if J == 27:
                pvm(q, 2)
                for x in pvc(q, 1)[:5]: a(x)
            if J == 29:
                for x in pvc(q, 1)[5:]: a(x)
            if J == 30:
                pvm(q, 3)
                for x in pvc(q, 2)[:4]: a(x)
            if J == 31:
                for x in pvc(q, 2)[4:7]: a(x)
        if 1 <= pos < 8:
            if J == 2:
                for x in pvc(pos, 2)[7:] + pvc(pos, 3)[:1]: a(x)
            if J == 6:
                for x in pvc(pos, 3)[1:4]: a(x)
            if J == 7:
                for x in pvc(pos, 3)[4:7]: a(x)
            if J == 11:
                for x in pvc(pos, 3)[7:]: a(x)
        if G == o.pflag_J:
            a(f's_waitcnt vmcnt(0)\nv_mov_b32 v253, s56\nv_mov_b32 v247, 0\ns_mov_b64 exec, 1')
            a('buffer_store_dword v253, v247, s[20:23], s57 offen sc1\ns_mov_b64 exec, -1')
    for x in swaps(31): a(x)
    a('s_nop 1')
    smm(31, 0); smm(31, 1)
    c1()
    a('s_lshl_b32 s44, s5, 3\ns_add_u32 s44, s44, s7\ns_lshl_b32 s44, s44, 2\ns_add_u32 s44, s44, s24\ns_lshl_b32 s44, s44, 6')
    a('s_add_u32 s44, s44, s40')
    a('s_lshl_b32 s45, s6, 2\ns_add_u32 s45, s45, s44\ns_mul_i32 s45, s45, 3072')
    a(f's_add_u32 s45, s45, {X_OFF}')
    a('s_lshl_b32 s46, s6, 4\ns_add_u32 s46, s46, s44\ns_mul_i32 s46, s46, 3072')
    a(f's_add_u32 s46, s46, {X_OFF}')
    PK = 72
    for jt in range(4):
        a(f's_cmp_eq_u32 s6, {jt}\ns_cbranch_scc1 L_skip{jt}')
        for i in range(8): a(f'v_cvt_pk_bf16_f32 v{PK+8*jt+i}, v{16*jt+2*i}, v{16*jt+2*i+1}')
        a(f's_add_u32 s47, s45, {jt*16*3072}')
        for h in range(2): a(f'buffer_store_dwordx4 {vr(PK+8*jt+4*h)}, v{VL}, s[20:23], s47 offen offset:{h*1024} sc1')
        a(f'L_skip{jt}:')
    a('s_cmp_eq_u32 s6, s40\ns_cbranch_scc1 L_skip4')
    for i in range(4): a(f'v_cvt_pk_bf16_f32 v{PK+32+i}, v{A16+2*i}, v{A16+2*i+1}')
    a(f's_mul_i32 s47, s40, {16*3072}\ns_add_u32 s47, s47, s45')
    a(f'buffer_store_dwordx4 {vr(PK+32)}, v{VL}, s[20:23], s47 offen offset:2048 sc1')
    a('L_skip4:')
    OWN = 112
    for jt in range(4):
        a(f's_cmp_lg_u32 s6, {jt}\ns_cbranch_scc1 L_mv{jt}')
        for i in range(16): a(f'v_mov_b32 v{OWN+i}, v{16*jt+i}')
        a(f'L_mv{jt}:')
    a(f'''s_and_b32 s47, s2, 0xfc
s_lshl_b32 s47, s47, 2
s_add_u32 s47, s47, s40
s_lshl_b32 s47, s47, 7
s_add_u32 s47, s47, {FLAG_OFF + XFLAG}
v_lshlrev_b32 v128, 5, v{VL}       ; lane*512
v_mov_b32 v129, s56
v_mov_b32 v130, 0
s_add_u32 s57, s57, {XFLAG}''')
    c1()
    a('s_waitcnt vmcnt(0)')
    c1()
    a('s_mov_b64 exec, 1\nbuffer_store_dword v129, v130, s[20:23], s57 offen sc1\ns_mov_b64 exec, 15')
    a('s_mov_b32 s58, 0\ns_lshl_b32 s59, 1, s6')
    a('''L_xpoll:
buffer_load_dword v131, v128, s[20:23], s47 offen sc1
s_add_u32 s58, s58, 1
s_waitcnt vmcnt(0)
v_cmp_eq_u32 vcc, s56, v131
s_nop 1
s_or_b32 s60, vcc_lo, s59
s_cmp_eq_u32 s60, 15
s_cbranch_scc1 L_xgo
s_cmp_lt_u32 s58, 0x20000
s_cbranch_scc1 L_xpoll
L_xgo:
s_mov_b64 exec, -1''')
    c1()
    RC = 132
    for k in range(1, 4):
        a(f's_add_u32 s60, s6, {k}\ns_and_b32 s60, s60, 3\ns_mul_i32 s60, s60, {4*3072}\ns_add_u32 s{60+k}, s60, s46')
        for h in range(2): a(f'buffer_load_dwordx4 {vr(RC+12*(k-1)+4*h)}, v{VL}, s[20:23], s{60+k} offen offset:{h*1024} sc1')
    a('s_cmp_lg_u32 s6, s40\ns_cbranch_scc1 L_norem0')
    for k in range(1, 4): a(f'buffer_load_dwordx4 {vr(RC+12*(k-1)+8)}, v{VL}, s[20:23], s{60+k} offen offset:2048 sc1')
    a('L_norem0:')
    a('s_mov_b32 s64, s52\ns_mov_b32 s65, s53\ns_mov_b32 s66, 2359296\ns_mov_b32 s67, 0x20000')
    a('''s_lshl_b32 s44, s7, 2
s_add_u32 s44, s44, s40
s_mul_i32 s44, s44, 73728
s_mul_i32 s45, s5, 1152
s_add_u32 s44, s44, s45
s_mul_i32 s45, s24, 288
s_add_u32 s44, s44, s45
s_lshl_b32 s45, s6, 6
s_add_u32 s45, s45, s44
s_add_u32 s46, s44, 256          ; remainder
s_add_u32 s47, s46, 36864
s_mov_b32 s58, 0xffff0000''')
    a(f'''v_lshrrev_b32 v168, 4, v{VL}       ; lane
v_and_b32 v169, 31, v168
v_mul_u32_u24 v169, 2304, v169
v_lshrrev_b32 v170, 5, v168
v_lshl_add_u32 v169, v170, 4, v169
v_and_b32 v170, 15, v168
v_mul_u32_u24 v170, 2304, v170
v_lshrrev_b32 v171, 4, v168
v_lshl_add_u32 v170, v171, 3, v170''')
    a('s_waitcnt vmcnt(0)')
    c1()
    for k in range(3):
        for i in range(8):
            s = RC + 12 * k + i
            a(f'v_lshlrev_b32 v172, 16, v{s}\nv_and_b32 v173, s58, v{s}\nv_pk_add_f32 {vr(OWN+2*i,2)}, {vr(OWN+2*i,2)}, v[172:173]')
    for i in range(8): a(f'v_cvt_pk_bf16_f32 v{OWN+i}, v{OWN+2*i}, v{OWN+2*i+1}')
    a('s_nop 1')
    for h in range(2):
        a(f'v_permlane32_swap_b32 v{OWN+4*h}, v{OWN+4*h+2}\nv_permlane32_swap_b32 v{OWN+4*h+1}, v{OWN+4*h+3}')
    for h in range(2): a(f'buffer_store_dwordx4 {vr(OWN+4*h)}, v169, s[64:67], s45 offen offset:{32*h}')
    a('s_cmp_lg_u32 s6, s40\ns_cbranch_scc1 L_norem1')
    for k in range(3):
        for i in range(4):
            s = RC + 12 * k + 8 + i
            a(f'v_lshlrev_b32 v172, 16, v{s}\nv_and_b32 v173, s58, v{s}\nv_pk_add_f32 {vr(A16+2*i,2)}, {vr(A16+2*i,2)}, v[172:173]')
    for i in range(4): a(f'v_cvt_pk_bf16_f32 v{A16+i}, v{A16+2*i}, v{A16+2*i+1}')
    a(f'buffer_store_dwordx2 {vr(A16,2)}, v170, s[64:67], s46 offen\nbuffer_store_dwordx2 {vr(A16+2,2)}, v170, s[64:67], s47 offen')
    a('L_norem1:')
    if o.stamp:
        c1(); a('s_waitcnt vmcnt(0)'); c1(); st(True, 1); a('s_mov_b32 s72, %d\nv_writelane_b32 v254, s72, 63' % st.n); st.flush()
    if o.amp:
        a(f'''s_waitcnt vmcnt(0)
s_memrealtime s[82:83]
s_waitcnt lgkmcnt(0)
s_sub_u32 s84, s82, s80
s_mul_i32 s84, s84, {o.amp}
L_amp:
s_memrealtime s[80:81]
s_waitcnt lgkmcnt(0)
s_sub_u32 s85, s80, s82
s_cmp_lt_u32 s85, s84
s_cbranch_scc1 L_amp''')
    a('s_endpgm')

    a('L_prod:')
    st.n = 2
    VX = 2; VW = 6; VK = 10; VV = 14; VO = 15; VLp = 20; PARK = 32
    a('s_sub_u32 s41, s40, 4          ; p')
    a('s_mul_i32 s44, s7, %d' % (128 * 1152)); srd(a, 8, 28, 44, 1179648)
    a('s_lshl_b32 s44, s43, 8'); srd(a, 12, 34, 44, 4718592)
    a('v_lshrrev_b32 v24, 3, v0\nv_lshrrev_b32 v25, 4, v0\nv_and_b32 v26, 7, v0')
    a('s_mul_i32 s42, s41, %d' % (32 * 1152))
    for i in range(4):
        a(f'v_xor_b32 v27, {4*(i&1)}, v25\nv_xor_b32 v27, v27, v26\nv_lshlrev_b32 v27, 4, v27')
        a(f'v_add_u32 v28, {8*i}, v24\nv_mul_u32_u24 v28, 1152, v28\nv_add_u32 v27, v27, v28')
        a(f'v_add_u32 v27, s42, v27\nv_subrev_u32 v{VX+i}, {1024*i}, v27')
    a('v_lshrrev_b32 v24, 5, v0\nv_and_b32 v26, 31, v0')
    a('s_lshl_b32 s42, s41, 16')
    for i in range(4):
        a(f'v_add_u32 v28, {2*i}, v24\nv_and_b32 v27, 3, v28\nv_lshlrev_b32 v27, 2, v27\nv_xor_b32 v27, v27, v26\nv_lshlrev_b32 v27, 4, v27')
        a(f'v_lshl_add_u32 v27, v28, 13, v27\nv_add_u32 v27, s42, v27\nv_subrev_u32 v{VW+i}, {1024*i}, v27')
    a('s_lshl_b32 s42, s41, 12         ; p*4096 lds')
    if o.rot1 == 1:
        a('s_lshl_b32 s46, s24, 1\ns_add_u32 s46, s46, s7\ns_sub_u32 s47, s46, 9\ns_cmp_ge_u32 s46, 9\ns_cselect_b32 s46, s47, s46')
    elif o.rot1 == 2:
        a('s_add_u32 s46, s24, s7\ns_and_b32 s46, s46, 1\ns_lshl_b32 s46, s46, 2')
    elif o.rot1 == 3:
        a('s_add_u32 s46, s24, s7\ns_mul_i32 s47, s46, 86\ns_lshr_b32 s47, s47, 8\ns_mul_i32 s47, s47, 3\ns_sub_u32 s46, s46, s47\ns_mul_i32 s46, s46, 3')
    elif o.rot1 == 4:
        a('s_add_u32 s46, s24, s7\ns_and_b32 s46, s46, 3\ns_lshl_b32 s46, s46, 1')
    else:
        a('s_mov_b32 s46, 0')
    a('s_mov_b32 s47, s46')
    vm = VM()
    def adv(s): a(f's_add_u32 s{s}, s{s}, 1\ns_cmp_eq_u32 s{s}, 9\ns_cselect_b32 s{s}, 0, s{s}')
    def ldX(pos):
        a(f's_add_u32 m0, s42, {XR_BASE + (pos % 2) * 16384}')
        a('s_lshl_b32 s44, s46, 7')
        for i in range(4): a(f'buffer_load_dwordx4 v{VX+i}, s[8:11], s44 offen offset:{1024*i}{nt(o.nt_x)} lds')
        adv(46)
        vm.add(('X', pos), 4)
    def ldW(t):
        a(f's_add_u32 m0, s42, {((t + 2) % 4) * 16384}')
        a('s_lshl_b32 s44, s47, 19')
        if t % 2: a('s_add_u32 s44, s44, 262144')
        for i in range(4): a(f'buffer_load_dwordx4 v{VW+i}, s[12:15], s44 offen offset:{1024*i}{nt(o.nt_wq)} lds')
        if t % 2: adv(47)
        vm.add(('W', t), 4)
    ldX(0); ldW(0); ldW(1)
    a('s_lshl_b32 s44, s7, 7\ns_add_u32 s44, s44, s43\ns_lshl_b32 s44, s44, 13'); srd(a, 16, 30, 44, 8388608)
    a('s_lshl_b32 s44, s7, 7\ns_lshl_b32 s45, s6, 3\ns_add_u32 s44, s44, s45\ns_lshl_b32 s44, s44, 13'); srd(a, 60, 32, 44, 8388608)
    a('s_mul_i32 s44, s6, %d\ns_mul_i32 s45, s24, 288\ns_add_u32 s44, s44, s45\ns_cmp_eq_u32 s24, 3\ns_cselect_b32 s45, 32, 0\ns_sub_u32 s44, s44, s45' % (1024 * 1152))
    srd(a, 56, 36, 44, 4718592)
    a('v_and_b32 v26, 15, v0\nv_xor_b32 v27, v26, v25')
    for i in range(4):
        a(f'v_xor_b32 v28, {4*i}, v27\nv_lshlrev_b32 v28, 4, v28\nv_lshl_add_u32 v{VK+i}, v25, 8, v28')
    a(f'v_lshlrev_b32 v28, 2, v25\nv_xor_b32 v28, v28, v26\nv_lshlrev_b32 v28, 4, v28\nv_lshl_add_u32 v{VV}, v25, 8, v28')
    a('s_mul_i32 s44, s41, 320')
    for i in range(5):
        a(f'v_add_u32 v26, {64*i}, v0\nv_add_u32 v26, s44, v26\nv_mul_u32_u24 v27, 3277, v26\nv_lshrrev_b32 v27, 16, v27')
        a(f'v_mul_u32_u24 v28, 20, v27\nv_sub_u32 v26, v26, v28\nv_mul_u32_u24 v27, 1152, v27\nv_lshl_add_u32 v27, v26, 4, v27')
        a(f'v_subrev_u32 v{VO+i}, {1024*(i%4)}, v27')
    a(f'v_lshlrev_b32 v{VLp}, 4, v0')
    a('s_and_b32 s44, s41, 1\ns_lshl_b32 s44, s44, 19\ns_lshr_b32 s45, s41, 1\ns_lshl_b32 s45, s45, 13\ns_add_u32 s50, s44, s45')
    a(f's_lshl_b32 s51, s41, 14\ns_add_u32 s51, s51, {R_BASE}')
    a('s_lshl_b32 s44, s24, 1\ns_add_u32 s64, s44, s49\ns_xor_b32 s65, s64, 1')
    a('s_sub_u32 s44, s7, 6\ns_cmp_ge_u32 s7, 6\ns_cselect_b32 s66, s44, s7')
    for i in range(6):
        a(f's_lshl_b32 s44, s24, 1\ns_add_u32 s44, s44, s66\ns_add_u32 s44, s44, 2\ns_and_b32 s{82+i}, s44, 7')
        if i < 5: a('s_add_u32 s66, s66, 1\ns_cmp_eq_u32 s66, 6\ns_cselect_b32 s66, 0, s66')
    HS = {0: 64, 1: 65}; HS.update({2 + i: 82 + i for i in range(6)})
    a('s_lshl_b32 s67, s41, 18         ; p*262144 (V batch)')
    a(f's_lshl_b32 s68, s41, 13\ns_add_u32 s68, s68, {R_BASE}     ; V lds')
    a('s_mul_i32 s69, s41, 5120')
    a(f's_lshl_b32 s70, s41, 11\ns_add_u32 s70, s70, {PRING}      ; P lds')
    a('s_lshl_b32 s71, s41, 16\ns_add_u32 s71, s71, s48')
    a(f's_lshl_b32 s74, s2, 9\ns_add_u32 s74, s74, {FLAG_OFF}')
    a('s_mov_b32 s88, s54\ns_mov_b32 s89, s55\ns_mov_b32 s90, 256\ns_mov_b32 s91, 0x20000')
    a('s_lshl_b32 s75, s5, 3\ns_add_u32 s75, s75, s7\ns_lshl_b32 s75, s75, 4')
    a('v_mov_b32 v21, 0')
    def ldK(mt):
        for g in range(2):
            a(f's_add_u32 m0, s51, {mt*8192+g*4096}')
            a(f's_add_u32 s44, s50, {mt*262144+g*4096}')
            for i in range(4): a(f'buffer_load_dwordx4 v{VK+i}, s[16:19], s44 offen offset:{1024*i}{nt(o.nt_k)} lds')
        vm.add(('K', mt), 8)
    def ldVpark(pos):
        a(f's_lshl_b32 s44, s{HS[pos]}, 13\ns_add_u32 s44, s44, s67\ns_add_u32 s45, s44, 4096')
        for i in range(8): a(f'buffer_load_dwordx4 {vr(PARK+pos*32+4*i)}, v{VV}, s[60:63], s{44+i//4} offen offset:{1024*(i%4)}{nt(o.nt_v)}')
        vm.add(('VP', pos), 8)
    def ldWo(u):
        a(f's_mul_i32 s44, s{HS[u//2]}, {128*1152}')
        if u % 2: a(f's_add_u32 s44, s44, {64*1152}')
        a(f's_add_u32 m0, s69, {(u % 4) * DSLOT}\ns_nop 0')
        for i in range(4): a(f'buffer_load_dwordx4 v{VO+i}, s[56:59], s44 offen offset:{1024*i}{nt(o.nt_wo)} lds')
        a(f's_add_u32 m0, s69, {(u % 4) * DSLOT + 4096}\ns_nop 0')
        a(f'buffer_load_dwordx4 v{VO+4}, s[56:59], s44 offen{nt(o.nt_wo)} lds')
        vm.add(('O', u), 5)
    def ldV(pos):
        a(f's_lshl_b32 s44, s{HS[pos]}, 13\ns_add_u32 s44, s44, s67')
        for g in range(2):
            a(f's_add_u32 m0, s68, {(pos & 1) * 32768 + g * 4096}')
            a('s_add_u32 s44, s44, 4096' if g else 's_nop 0')
            for i in range(4): a(f'buffer_load_dwordx4 v{VV}, s[60:63], s44 offen offset:{1024*i}{nt(o.nt_v)} lds')
        vm.add(('V', pos), 8)
    def ldP(pos):
        a(f's_add_u32 m0, s70, {(pos & 1) * 8192}')
        a(f's_lshl_b32 s44, s{HS[pos]}, 11\ns_add_u32 s44, s44, s71')
        for i in range(2): a(f'buffer_load_dwordx4 v{VLp}, s[20:23], s44 offen offset:{1024*i} sc1 lds')
        vm.add(('P', pos), 2)
    def wait(tags):
        n = vm.wait_for(tags)
        st()
        if n is not None: a(f's_waitcnt vmcnt({n})')
        st()
    ncls = len(o.runs)
    if ncls > 1:
        a('s_xor_b32 s44, s7, s24\ns_and_b32 s44, s44, 1\ns_cmp_eq_u32 s44, 1\ns_cbranch_scc1 L_cls1')
    pre_ops = list(vm.ops); n0 = st.n
    for cls in range(ncls):
        if cls: a(f'L_cls{cls}:')
        vm.ops = list(pre_ops); st.n = n0
        runs = o.runs[cls]
        for t in range(-1, 18):
            tags = {('W', t + 1), ('X', (t + 1) // 2)}
            if t == 15: tags |= {('K', 0), ('K', 1)}
            if t in (16, 17): a('s_waitcnt lgkmcnt(0)')
            wait(tags if t < 17 else set())
            a('s_barrier')
            if t == -1:
                ldX(1); ldW(2); ldW(3)
                a('s_mov_b64 exec, 1\nbuffer_load_dword v22, v21, s[20:23], s74 offen sc1\ns_mov_b64 exec, -1'); vm.add('N0')
            elif t + 4 <= 17: ldW(t + 4)
            if t >= 0 and t % 2 == 1 and (t - 1) // 2 + 2 <= 8: ldX((t - 1) // 2 + 2)
            if t == 2:
                a(f's_waitcnt vmcnt({vm.wait_for({"N0"})})')
                a('v_add_u32 v22, 1, v22\nv_max_u32 v22, 1, v22\nv_mov_b32 v23, 0\nv_mov_b32 v24, v22')
                a('s_cmp_eq_u32 s41, 0\ns_cselect_b32 s44, s75, 0x1000\ns_mov_b64 exec, 1')
                a('buffer_atomic_cmpswap v[22:23], v21, s[88:91], s44 offen sc0\ns_mov_b64 exec, -1'); vm.add('N1')
            if t == 15:
                a(f's_waitcnt vmcnt({vm.wait_for({"N1"})})')
                a(f'v_cmp_eq_u32 vcc, 0, v22\nv_mov_b32 v23, {PRING}\ns_nop 0\nv_cndmask_b32 v22, v22, v24, vcc')
                a('s_cmp_lg_u32 s41, 0\ns_cbranch_scc1 L_nn%d\ns_mov_b64 exec, 1\nds_write_b32 v23, v22\ns_mov_b64 exec, -1\nL_nn%d:' % (cls, cls))
                ldWo(0)
            if t == 16:
                a(f'ds_read_b32 v22, v23')
                ldWo(1)
            if t in runs:
                r = runs[t]
                (ldK if r[0] == 'K' else ldVpark)(int(r[1]))
        a('v_readfirstlane_b32 s75, v22     ; nonce')
        parked = [int(r[1]) for r in runs.values() if r[0] == 'V']
        assert parked == [int(r[1]) for r in o.runs[0].values() if r[0] == 'V']
        post = []
        for x in o.post_c1:
            if x[0] == 'V' and int(x[1]) in parked: continue
            post.append(x)
            (ldV if x[0] == 'V' else ldWo)(int(x[1]))
        a(f'v_add_u32 v21, s68, v{VLp}')
        for pos in parked:
            wait({('VP', pos)})
            for i in range(8): a(f'ds_write_b128 v21, {vr(PARK+pos*32+4*i)} offset:{pos*32768+i*1024}')
        wait({('O', 0), ('V', 0)})
        tail_ops = vm.ops[-(len([y for y in vm.ops if y in [('O', 1)] + [(x[0], int(x[1])) for x in post]])):]
        a('s_waitcnt lgkmcnt(0)')
        a('s_barrier')
        if cls + 1 < ncls: a('s_branch L_ph2')
    a('L_ph2:')
    vm.ops = list(tail_ops)
    for x in o.post_c2: (ldV if x[0] == 'V' else ldWo)(int(x[1]))
    a(f'''v_lshrrev_b32 v22, 2, v0
v_lshlrev_b32 v22, 12, v22
v_and_b32 v23, 3, v0
v_lshl_add_u32 v22, v23, 7, v22
s_andn2_b32 s74, s2, 0x18
s_lshl_b32 s74, s74, 9
s_add_u32 s74, s74, {FLAG_OFF}''')
    for u in range(15):
        tags = {('O', u + 1)}
        if u % 2 == 0 and 1 <= u // 2 + 1 <= 7: tags |= {('V', u // 2 + 1), ('P', u // 2 + 1)}
        wait(tags)
        a('s_barrier')
        if u == 1:
            a('s_mov_b64 exec, 0xffff\nbuffer_load_dword v23, v22, s[20:23], s74 offen sc1\ns_mov_b64 exec, -1'); vm.add('F')
        if u + 4 <= 15: ldWo(u + 4)
        if u == 0: ldV(2)
        if u % 2 == 1 and (u - 1) // 2 + 3 <= 7: ldV((u - 1) // 2 + 3)
        if u == 1:
            a(f's_mov_b32 s45, 0\ns_waitcnt vmcnt({vm.wait_for({"F"})})')
            a('''L_ppoll:
s_mov_b64 exec, 0xffff
v_cmp_eq_u32 vcc, s75, v23
s_add_u32 s45, s45, 1
s_nop 0
s_cmp_eq_u32 vcc_lo, 0xffff
s_cbranch_scc1 L_pgo
buffer_load_dword v23, v22, s[20:23], s74 offen sc1
s_waitcnt vmcnt(0)
s_cmp_lt_u32 s45, 0x20000
s_cbranch_scc1 L_ppoll
L_pgo:
s_mov_b64 exec, -1''')
            st()
            ldP(2)
        if u % 2 == 1 and (u - 1) // 2 + 3 <= 7: ldP((u - 1) // 2 + 3)
    if o.stamp: st(True, 1); a('s_mov_b32 s72, %d\nv_writelane_b32 v254, s72, 63' % st.n); st.flush()
    a('L_end:\ns_endpgm')
    a('.section .rodata,"a"')
    a(kd(name, 256))
    return a.text()

if __name__ == '__main__':
    t = gen()
    e = hazard.check(t)
    print(len(e), 'hazards'); print('\n'.join(e[:40]))
    open(sys.argv[1], 'w').write(t)
```

```python
import sys
from asm import *
import hazard

P_OFF = 0
FLAG_OFF = 4 << 20
X_OFF = 8 << 20
WS_SIZE = 32 << 20
STAMP_OFF = 64 << 20
CEXP = 0x3e0293ee
WSLOT = [0, 16384, 32768, 49152, 81920, 98304]
XBASE = 114688
KDST = [114688, 32768, 49152, 131072]; KGATE = [14, 15, 16, 16]
F_FREE = 81568; O_NONCE = 16; O_FULL = 320; O_FULL2 = 336
PRING = 81920; VBASE = 98304; DSLOT = 20480
SPIN = 0x40000

class Opt:
    nt_k = False; nt_v = False; nt_wq = False; nt_wo = False; nt_x = False
    stamp = 0
    rot1 = 1
    nruns = 4
    masks = [(3, 7, 10, 13), (5, 9, 12, 15)]
    pflag_G = 14
    ahead = 7
    amp = 0
    out_flags = ''
    o3_early = True
    csleep = ''
    psleep = 1
    cap = 0
    tbl_ws = False
    p_sc1 = True

def nt(b): return ' nt' if b else ''
def vr(b, n=4): return f'v[{b}:{b+n-1}]'

class Stamper:
    RT = False
    def __init__(self, a, on): self.a = a; self.on = on; self.on0 = on; self.n = 0
    def __call__(self, rt=False, lvl=1):
        if self.on < lvl: return
        a = self.a
        a('s_memrealtime s[92:93]' if rt or Stamper.RT else 's_memtime s[92:93]')
        a('s_waitcnt lgkmcnt(0)')
        a(f'v_writelane_b32 v{255 - self.n // 64}, s92, {self.n % 64}')
        self.n += 1
        assert self.n <= 127
    def dyn(self):
        if self.on < 3: return
        self.a('s_memtime s[92:93]\ns_waitcnt lgkmcnt(0)\nv_writelane_b32 v254, s92, m0\ns_add_u32 m0, m0, 1\ns_min_u32 m0, m0, 62')
    def val(self, sreg):
        if not self.on: return
        self.a(f's_add_u32 s92, {sreg}, s90')
        self.a(f'v_writelane_b32 v{255 - self.n // 64}, s92, {self.n % 64}')
        self.n += 1
    def flush(self):
        if not self.on: return
        a = self.a
        self(True)
        a(f's_mov_b32 s92, {self.n}\nv_writelane_b32 v254, s92, 63'); self.on = 0
        a('s_mov_b32 s96, s38\ns_mov_b32 s97, s39\ns_mov_b32 s98, 0x10000000\ns_mov_b32 s99, 0x20000')
        a(f's_lshl_b32 s92, s2, 3\ns_add_u32 s92, s92, s40\ns_lshl_b32 s92, s92, 9\ns_add_u32 s92, s92, {STAMP_OFF}')
        a('v_mbcnt_lo_u32_b32 v253, -1, 0\nv_mbcnt_hi_u32_b32 v253, -1, v253\nv_lshlrev_b32 v253, 2, v253')
        a('buffer_store_dword v255, v253, s[96:99], s92 offen\nbuffer_store_dword v254, v253, s[96:99], s92 offen offset:256')

def srd(a, d, base, off_s, size):
    a(f's_add_u32 s{d}, s{base}, s{off_s}')
    a(f's_addc_u32 s{d+1}, s{base+1}, 0')
    a(f's_sub_u32 s{d+2}, {size}, s{off_s}')
    a(f's_mov_b32 s{d+3}, 0x20000')

def gen(o=Opt):
    a = A()
    name = KN + '_kernel'
    a('; @launch grid=(256,1,1) block=(512,1,1) lds=163840')
    a('.amdgcn_target "amdgcn-amd-amdhsa--gfx950"\n.text')
    a(head(name))
    a('''s_cmp_ge_u32 s2, 256
s_cbranch_scc1 L_end
s_bfe_u32 s5, s2, 0x10002      ; branch
s_mul_i32 s25, s5, 40
s_add_u32 s26, s0, s25
s_addc_u32 s27, s1, 0
s_load_dwordx8 s[28:35], s[26:27], 0     ; x k v wq
s_load_dwordx2 s[36:37], s[26:27], 32    ; wo
s_load_dwordx4 s[52:55], s[0:1], 80
s_load_dwordx2 s[38:39], s[0:1], 96      ; ws
v_lshrrev_b32 v1, 6, v0
v_and_b32 v0, 63, v0
v_readfirstlane_b32 s40, v1
s_and_b32 s6, s2, 3           ; hg
s_lshr_b32 s7, s2, 5          ; bg
s_bfe_u32 s24, s2, 0x20003    ; sub
s_lshl_b32 s41, s6, 3
s_lshl_b32 s42, s24, 1
s_add_u32 s43, s41, s42''')
    st = Stamper(a, int(o.stamp)); st(True); st()
    if o.amp: a('s_memrealtime s[94:95]')
    a('s_cmp_lt_u32 s40, 4\ns_cbranch_scc1 L_cons')

    def common_scalars():
        a(f's_mov_b32 s20, s38\ns_mov_b32 s21, s39\ns_mov_b32 s22, {WS_SIZE}\ns_mov_b32 s23, 0x20000')
        a('s_lshl_b32 s48, s5, 5\ns_lshl_b32 s44, s7, 2\ns_add_u32 s48, s48, s44\ns_lshl_b32 s48, s48, 5\ns_lshl_b32 s44, s6, 3\ns_add_u32 s48, s48, s44\ns_lshl_b32 s48, s48, 11')
        if P_OFF: a(f's_add_u32 s48, s48, {P_OFF}')
        a('s_and_b32 s49, s7, 1')

    VX = 2; VW = 6; VK = 10; VV = 14; VO = 15; VLp = 20; VZ = 21; VFA = 25; PARK = 32
    a('s_sub_u32 s41, s40, 4          ; p')
    a(f'''v_lshrrev_b32 v24, 3, v0
v_lshrrev_b32 v25, 4, v0
v_and_b32 v26, 7, v0
v_xor_b32 v26, v26, v25
v_mul_u32_u24 v24, 1152, v24
s_mul_i32 s42, s41, {32*1152}
v_lshl_add_u32 v27, v26, 4, v24
v_add_u32 v{VX}, s42, v27
v_xor_b32 v26, 4, v26
v_lshl_add_u32 v27, v26, 4, v24
s_add_u32 s42, s42, 8192
v_add_u32 v{VX+1}, s42, v27
v_add_u32 v{VX+2}, 16384, v{VX}
v_add_u32 v{VX+3}, 16384, v{VX+1}
v_lshrrev_b32 v24, 5, v0
v_and_b32 v26, 31, v0
v_lshlrev_b32 v27, 2, v24
v_xor_b32 v26, v26, v27
v_lshlrev_b32 v26, 4, v26
v_lshl_add_u32 v26, v24, 13, v26
s_lshl_b32 s42, s41, 16
v_add_u32 v{VW}, s42, v26
v_xor_b32 v26, 128, v{VW}
v_add_u32 v{VW+1}, 15360, v26
v_add_u32 v{VW+2}, 30720, v{VW}
v_add_u32 v{VW+3}, 30720, v{VW+1}
s_lshl_b32 s42, s41, 12         ; p*4096 lds''')
    if o.rot1 == 1:
        a('s_lshl_b32 s46, s24, 1\ns_add_u32 s46, s46, s7\ns_sub_u32 s47, s46, 9\ns_cmp_ge_u32 s46, 9\ns_cselect_b32 s46, s47, s46')
    elif o.rot1 == 2:
        a('s_add_u32 s46, s24, s7\ns_and_b32 s46, s46, 1\ns_lshl_b32 s46, s46, 2')
    elif o.rot1 == 3:
        a('s_add_u32 s46, s24, s7\ns_mul_i32 s47, s46, 86\ns_lshr_b32 s47, s47, 8\ns_mul_i32 s47, s47, 3\ns_sub_u32 s46, s46, s47\ns_mul_i32 s46, s46, 3')
    elif o.rot1 == 4:
        a('s_add_u32 s46, s24, s7\ns_and_b32 s46, s46, 3\ns_lshl_b32 s46, s46, 1')
    else:
        a('s_mov_b32 s46, 0')
    a('s_mul_i32 s44, s7, %d\ns_lshl_b32 s45, s43, 8' % (128 * 1152))
    a('s_waitcnt lgkmcnt(0)')
    srd(a, 8, 28, 44, 1179648); srd(a, 12, 34, 45, 4718592)
    def thr(n):
        if o.cap: a(f's_waitcnt vmcnt({o.cap - n})')
    def ldX(S):
        thr(4)
        a(f's_add_u32 m0, s42, {XBASE + (S % 3) * 16384}')
        a('s_lshl_b32 s44, s46, 7')
        for i in range(4): a(f'buffer_load_dwordx4 v{VX+i}, s[8:11], s44 offen offset:{1024*i}{nt(o.nt_x)} lds')
    def ldW(t):
        thr(4)
        a(f's_add_u32 m0, s42, {WSLOT[t % 6]}')
        a('s_lshl_b32 s44, s46, 19' if t % 2 == 0 else 's_lshl_b32 s44, s46, 19\ns_add_u32 s44, s44, 262144')
        for i in range(4): a(f'buffer_load_dwordx4 v{VW+i}, s[12:15], s44 offen offset:{1024*i}{nt(o.nt_wq)} lds')
        if t % 2: a('s_add_u32 s46, s46, 1\ns_cmp_eq_u32 s46, 9\ns_cselect_b32 s46, 0, s46')
    def flag(n):
        a(f's_mov_b32 m0, s76\ns_mov_b64 exec, 1\ns_movk_i32 s44, {4*n}')
        a(f'buffer_load_dword v{VZ}, s[72:75], s44 offen lds\ns_mov_b64 exec, -1')
    def gate(v):
        if isinstance(v, int):
            if v <= 0: return
            a(f's_movk_i32 s77, {v}')
        else: a(f's_mov_b32 s77, {v}')
        a('s_call_b64 s[78:79], L_gate')
        st(lvl=2)
    def runpt(t):
        if any(t in m[:o.nruns] for m in o.masks):
            a(f's_bitcmp1_b32 s80, {t}\ns_cbranch_scc0 L_norun{t}\ns_call_b64 s[78:79], L_run\nL_norun{t}:')
    ldX(0); ldW(0)
    a(f'''v_mov_b32 v{VZ}, 0
v_mov_b32 v22, 0
v_mov_b32 v23, 0
v_mov_b32 v24, 0
v_mov_b32 v{VFA}, {F_FREE}
L_pc:
s_getpc_b64 s[72:73]
s_add_u32 s72, s72, L_tbl-L_pc-4
s_addc_u32 s73, s73, 0
{'s_add_u32 s72, s38, 0x4600000' + chr(10) + 's_addc_u32 s73, s39, 0' if o.tbl_ws else ''}
s_mov_b32 s74, 256
s_mov_b32 s75, 0x20000
s_lshl_b32 s76, s41, 2
s_add_u32 s76, s76, {F_FREE + O_FULL}
s_cmp_lg_u32 s41, 0
s_cbranch_scc1 L_nz
s_mov_b64 exec, 1
v_mov_b32 v20, 0
ds_write_b128 v{VFA}, v[20:23]
ds_write_b128 v{VFA}, v[20:23] offset:{O_FULL}
ds_write_b128 v{VFA}, v[20:23] offset:{O_FULL2}
s_mov_b64 exec, -1
s_waitcnt lgkmcnt(0)
L_nz:
s_barrier''')
    flag(1); ldW(1); flag(2)
    st(lvl=2)
    common_scalars()
    a('s_lshl_b32 s44, s7, 7\ns_add_u32 s44, s44, s43\ns_lshl_b32 s44, s44, 13'); srd(a, 16, 30, 44, 8388608)
    a('s_lshl_b32 s44, s7, 7\ns_lshl_b32 s45, s6, 3\ns_add_u32 s44, s44, s45\ns_lshl_b32 s44, s44, 13'); srd(a, 60, 32, 44, 8388608)
    a('v_lshrrev_b32 v24, 4, v0\nv_and_b32 v26, 15, v0\nv_xor_b32 v27, v26, v24\nv_lshlrev_b32 v27, 4, v27')
    a(f'v_lshl_add_u32 v{VK}, v24, 8, v27')
    for i in range(1, 4): a(f'v_xor_b32 v{VK+i}, {64*i}, v{VK}')
    a(f'v_lshlrev_b32 v28, 2, v24\nv_xor_b32 v28, v28, v26\nv_lshlrev_b32 v28, 4, v28\nv_lshl_add_u32 v{VV}, v24, 8, v28')
    a(f'v_lshlrev_b32 v{VLp}, 4, v0')
    a('s_and_b32 s44, s41, 1\ns_lshl_b32 s44, s44, 19\ns_lshr_b32 s45, s41, 1\ns_lshl_b32 s45, s45, 13\ns_add_u32 s50, s44, s45')
    a('s_lshl_b32 s44, s24, 1\ns_add_u32 s64, s44, s49\ns_xor_b32 s65, s64, 1')
    a('s_lshl_b32 s67, s41, 18         ; p*262144 (V batch)')
    mk = lambda m: sum(1 << t for t in m[:o.nruns])
    if len(o.masks) > 1:
        a(f's_xor_b32 s44, s7, s24\ns_and_b32 s44, s44, 1\ns_cmp_eq_u32 s44, 0\ns_mov_b32 s80, {mk(o.masks[1])}\ns_cselect_b32 s80, {mk(o.masks[0])}, s80')
    else: a(f's_mov_b32 s80, {mk(o.masks[0])}')
    a('s_mov_b32 s81, 0')
    runpt(0); runpt(1)
    a(f's_lshl_b32 s66, s2, 9\ns_add_u32 s66, s66, {FLAG_OFF}')
    a(f's_mov_b64 exec, 1\nbuffer_load_dword v22, v{VZ}, s[20:23], s66 offen sc1\ns_mov_b64 exec, -1')
    for S in range(1, 9):
        t = 2 * S
        gate(t - 5); ldW(t)
        gate(t - 4); ldX(S); flag(t + 1); runpt(t)
        ldW(t + 1); flag(t + 2); runpt(t + 1)
        if S == 2:
            a('s_mul_i32 s44, s6, %d\ns_mul_i32 s45, s24, 288\ns_add_u32 s44, s44, s45' % (1024 * 1152))
            srd(a, 56, 36, 44, 4718592)
            a('s_mul_i32 s44, s41, 320')
            for i in range(5):
                a(f'v_add_u32 v26, {64*i}, v0\nv_add_u32 v26, s44, v26\nv_mul_u32_u24 v27, 3277, v26\nv_lshrrev_b32 v27, 16, v27')
                a(f'v_mul_u32_u24 v28, 20, v27\nv_sub_u32 v26, v26, v28\nv_min_u32 v26, 17, v26\nv_mul_u32_u24 v27, 1152, v27\nv_lshl_add_u32 v27, v26, 4, v27')
                a(f'v_subrev_u32 v{VO+i}, {1024*(i%4)}, v27')
            a('s_sub_u32 s44, s7, 6\ns_cmp_ge_u32 s7, 6\ns_cselect_b32 s45, s44, s7')
            for i in range(6):
                a(f's_lshl_b32 s44, s24, 1\ns_add_u32 s44, s44, s45\ns_add_u32 s44, s44, 2\ns_and_b32 s{82+i}, s44, 7')
                if i < 5: a('s_add_u32 s45, s45, 1\ns_cmp_eq_u32 s45, 6\ns_cselect_b32 s45, 0, s45')
            a(f's_lshl_b32 s68, s41, 13\ns_add_u32 s68, s68, {VBASE}     ; V lds')
            a('s_mul_i32 s69, s41, 5120')
            a(f's_lshl_b32 s70, s41, 11\ns_add_u32 s70, s70, {PRING}      ; P lds')
            a('s_lshl_b32 s71, s41, 16\ns_add_u32 s71, s71, s48')
            a('s_mov_b32 s31, -1\ns_cmp_eq_u32 s41, 3\ns_cselect_b32 s31, 0x3ffff3ff, s31\ns_mov_b32 s30, -1')
            a(f's_mov_b32 s51, {KDST[0]}\ns_mov_b32 s47, {KGATE[0]}')
            for p in range(1, 4): a(f's_cmp_eq_u32 s41, {p}\ns_cselect_b32 s51, {KDST[p]}, s51\ns_cselect_b32 s47, {KGATE[p]}, s47')
            a('s_mov_b32 s88, s54\ns_mov_b32 s89, s55\ns_mov_b32 s90, 256\ns_mov_b32 s91, 0x20000')
            a('s_lshl_b32 s44, s5, 3\ns_add_u32 s44, s44, s7\ns_lshl_b32 s44, s44, 4')
            a('s_cmp_eq_u32 s41, 0\ns_cselect_b32 s44, s44, 0x1000')
            a('s_waitcnt vmcnt(28)')
            a('v_add_u32 v22, 1, v22\nv_max_u32 v22, 1, v22\nv_mov_b32 v23, 0\nv_mov_b32 v24, v22\ns_mov_b64 exec, 1')
            a(f'buffer_atomic_cmpswap v[22:23], v{VZ}, s[88:91], s44 offen sc0\ns_mov_b64 exec, -1')
    HS = {0: 64, 1: 65}; HS.update({2 + i: 82 + i for i in range(6)})
    def ldWo(u):
        thr(5)
        a(f's_add_u32 m0, s69, {(u % 4) * DSLOT}')
        a(f's_mul_i32 s44, s{HS[u//2]}, {128*1152}')
        if u % 2: a(f's_add_u32 s44, s44, {64*1152}')
        for i in range(4): a(f'buffer_load_dwordx4 v{VO+i}, s[56:59], s44 offen offset:{1024*i}{nt(o.nt_wo)} lds')
        a(f's_add_u32 m0, s69, {(u % 4) * DSLOT + 4096}\ns_mov_b64 exec, s[30:31]')
        a(f'buffer_load_dwordx4 v{VO+4}, s[56:59], s44 offen{nt(o.nt_wo)} lds\ns_mov_b64 exec, -1')
    def ldV(pos):
        a(f's_lshl_b32 s44, s{HS[pos]}, 13\ns_add_u32 s44, s44, s67')
        for g in range(2):
            thr(4)
            a(f's_add_u32 m0, s68, {(pos & 1) * 32768 + g * 4096}')
            a('s_add_u32 s44, s44, 4096' if g else 's_nop 0')
            for i in range(4): a(f'buffer_load_dwordx4 v{VV}, s[60:63], s44 offen offset:{1024*i}{nt(o.nt_v)} lds')
    def ldP(pos):
        thr(3)
        a(f's_add_u32 m0, s70, {(pos & 1) * 8192}')
        a(f's_lshl_b32 s44, s{HS[pos]}, 11\ns_add_u32 s44, s44, s71')
        for i in range(2): a(f'buffer_load_dwordx4 v{VLp}, s[20:23], s44 offen offset:{1024*i}{" sc1" if o.p_sc1 else ""} lds')
    def full2(n):
        a(f'v_mov_b32 v27, {n}\ns_mov_b64 exec, 1\nds_write_b32 v26, v27\ns_mov_b64 exec, -1')
    gate(14); ldWo(0); flag(19)
    gate('s47')
    a(f'v_add_u32 v28, s51, v{VLp}\ns_add_u32 s44, s76, 16\nv_mov_b32 v26, s44')
    a('s_waitcnt vmcnt(6)')
    st(lvl=2)
    a(f'v_cmp_eq_u32 vcc, 0, v22\ns_cmp_lg_u32 s41, 0\ns_nop 0\nv_cndmask_b32 v22, v22, v24, vcc\ns_cbranch_scc1 L_nn')
    a(f's_mov_b64 exec, 1\nds_write_b32 v{VFA}, v22 offset:{O_NONCE}\ns_mov_b64 exec, -1\nL_nn:')
    for i in range(16): a(f'ds_write_b128 v28, {vr(PARK+4*i)} offset:{i*1024}')
    full2(1)
    gate(19)
    a(f'ds_read_b32 v22, v{VFA} offset:{O_NONCE}')
    ldWo(1)
    if o.nruns < 4: ldV(1)
    flag(20)
    a(f'v_add_u32 v28, s68, v{VLp}')
    for pos in range(o.nruns - 2):
        for i in range(8): a(f'ds_write_b128 v28, {vr(PARK+64+pos*32+4*i)} offset:{pos*32768+i*1024}')
        full2(2 + pos)
    ldWo(2); flag(21)
    if o.o3_early: ldWo(3)
    a(f'''v_lshrrev_b32 v23, 2, v0
v_lshlrev_b32 v23, 12, v23
v_and_b32 v24, 3, v0
v_lshl_add_u32 v23, v24, 7, v23
s_andn2_b32 s66, s2, 0x18
s_lshl_b32 s66, s66, 9
s_add_u32 s66, s66, {FLAG_OFF}
s_waitcnt lgkmcnt(0)
v_readfirstlane_b32 s43, v22     ; tag''')
    gate(21)
    if not o.o3_early: ldWo(3)
    ldV(2)
    gate(22); ldWo(4)
    a(f'''s_mov_b32 s45, 0
s_mov_b64 exec, 0xffff
L_ppoll:
buffer_load_dword v24, v23, s[20:23], s66 offen sc1
s_add_u32 s45, s45, 1
s_waitcnt vmcnt(0)
v_cmp_eq_u32 vcc, s43, v24
s_nop 0
s_cmp_eq_u32 vcc_lo, 0xffff
s_cbranch_scc1 L_pgo
s_cmp_lt_u32 s45, {SPIN}
s_cbranch_scc1 L_ppoll
L_pgo:
s_mov_b64 exec, -1''')
    st(lvl=2)
    ldP(2); flag(23)
    for q in range(3, 8):
        gate(17 + 2 * q); ldWo(2 * q - 1); ldV(q); ldP(q); flag(18 + 2 * q)
        gate(18 + 2 * q); ldWo(2 * q); flag(19 + 2 * q)
    gate(33); ldWo(15); flag(34)
    st.flush()
    a('L_end:\ns_endpgm')
    a(f'''L_gate:
s_mov_b32 s45, 0
L_gate1:
ds_read_b128 v[28:31], v{VFA}
s_add_u32 s45, s45, 1
s_waitcnt lgkmcnt(0)
v_min3_u32 v28, v28, v29, v30
v_min_u32 v28, v28, v31
v_cmp_gt_u32 vcc, s77, v28
s_cbranch_vccz L_gate2
s_sleep {o.psleep}
s_cmp_lt_u32 s45, {SPIN}
s_cbranch_scc1 L_gate1
L_gate2:
s_setpc_b64 s[78:79]''')
    a('L_run:')
    for r in range(o.nruns):
        if r + 1 < o.nruns: a(f's_cmp_lg_u32 s81, {r}\ns_cbranch_scc1 L_run{r+1}')
        if r < 2:
            a(f's_add_u32 s44, s50, {r*262144}\ns_add_u32 s45, s44, 4096')
            for i in range(8): a((f's_waitcnt vmcnt({o.cap-4})\n' if o.cap and i % 4 == 0 else '') + f'buffer_load_dwordx4 {vr(PARK+r*32+4*i)}, v{VK+i%4}, s[16:19], s{44+i//4} offen offset:{1024*(i%4)}{nt(o.nt_k)}')
        else:
            a(f's_lshl_b32 s44, s{64+r-2}, 13\ns_add_u32 s44, s44, s67\ns_add_u32 s45, s44, 4096')
            for i in range(8): a((f's_waitcnt vmcnt({o.cap-4})\n' if o.cap and i % 4 == 0 else '') + f'buffer_load_dwordx4 {vr(PARK+r*32+4*i)}, v{VV}, s[60:63], s{44+i//4} offen offset:{1024*(i%4)}{nt(o.nt_v)}')
        a('s_add_u32 s81, s81, 1\ns_setpc_b64 s[78:79]')
        if r + 1 < o.nruns: a(f'L_run{r+1}:')

    a('L_cons:')
    st.n = 2; st.on = st.on0
    if o.stamp: a('s_mov_b32 s100, 0\ns_mov_b32 s101, 0\ns_mov_b32 s90, s92\ns_mov_b32 m0, 0')
    ACC = 0; FB = 128; WA = 176; WA2 = 180; XA = 184; KR = 176; F2 = 236
    VL = 240; FA = 241; FW = 242; VN = 243; FV = 244; VT = 248; VBs = 249; WSC = 250; PA = 251; WBs = 252
    KB = 235
    slow = []
    def check(off, need, src=FV, lbl=[0]):
        lbl[0] += 1; L = f'L_ck{lbl[0]}'
        r = [f'v_min3_u32 v{VT}, v{src}, v{src+1}, v{src+2}', f'v_min_u32 v{VT}, v{VT}, v{src+3}',
             f'v_cmp_gt_u32 vcc, {need}, v{VT}', f's_cbranch_vccnz {L}s', f'{L}:']
        pre = 's_memtime s[84:85]\n' if o.stamp else ''
        post = f'{L}u:\ns_memtime s[86:87]\ns_waitcnt lgkmcnt(0)\ns_sub_u32 s86, s86, s84\ns_add_u32 s101, s101, s86\ns_add_u32 s100, s100, 1\n' if o.stamp else f'{L}u:\n'
        slow.append(f'''{L}s:
{pre}s_mov_b32 s59, 0
{L}t:
ds_read_b128 {vr(src)}, v{FA} offset:{off}
s_add_u32 s59, s59, 1
s_waitcnt lgkmcnt(0)
v_min3_u32 v{VT}, v{src}, v{src+1}, v{src+2}
v_min_u32 v{VT}, v{VT}, v{src+3}
v_cmp_gt_u32 vcc, {need}, v{VT}
s_cbranch_vccz {L}u
{o.csleep}s_cmp_lt_u32 s59, {SPIN}
s_cbranch_scc1 {L}t
{post}s_branch {L}''')
        return r
    def free(): return [f'v_add_u32 v{VN}, 1, v{VN}', 's_mov_b64 exec, 1', f'ds_write_b32 v{FW}, v{VN}', 's_mov_b64 exec, -1']
    a('s_and_b32 s41, s40, 1          ; mb\ns_lshr_b32 s42, s40, 1         ; hs')
    a(f'''v_lshrrev_b32 v1, 5, v0          ; hf
v_bfe_u32 v2, v0, 2, 2           ; r
v_and_b32 v3, 3, v0              ; c
v_bfe_u32 v4, v0, 4, 1           ; G&1
v_lshl_add_u32 v5, v1, 3, v2
v_lshlrev_b32 v5, 9, v5          ; (8hf+r)*512
v_and_b32 v6, 1, v3
v_lshl_add_u32 v6, v4, 1, v6     ; cc
v_lshl_add_u32 v5, v6, 4, v5
v_lshrrev_b32 v7, 1, v3
v_lshl_add_u32 v5, v7, 3, v5
v_lshl_add_u32 v5, v2, 6, v5     ; + r*64
s_lshl_b32 s44, s42, 8
v_add_u32 v{WA}, s44, v5''')
    for n_ in range(1, 4): a(f'v_xor_b32 v{WA+n_}, {64*n_}, v{WA}')
    for n_ in range(4): a(f'v_add_u32 v{WA2+n_}, 0x10000, v{WA+n_}')
    a(f'''v_lshl_add_u32 v5, v1, 2, v2     ; 4hf+r
v_mul_u32_u24 v6, 320, v5
v_lshl_add_u32 v6, v4, 5, v6
v_lshl_add_u32 v{WBs}, v3, 3, v6
v_lshl_add_u32 v6, v4, 4, v5     ; 16(G&1)+4hf+r
v_mul_u32_u24 v6, 320, v6
v_lshl_add_u32 v6, v3, 3, v6
v_add_u32 v{WSC}, 256, v6
v_lshlrev_b32 v6, 8, v5
v_lshl_add_u32 v6, v2, 6, v6
v_lshl_add_u32 v6, v4, 5, v6
v_lshl_add_u32 v6, v3, 3, v6
s_lshl_b32 s44, s40, 13
s_add_u32 s44, s44, {VBASE}
v_add_u32 v{VBs}, s44, v6
v_and_b32 v2, 31, v0             ; m
v_bfe_u32 v3, v0, 1, 3
v_xor_b32 v3, v3, v1
v_lshlrev_b32 v3, 4, v3
v_lshl_add_u32 v3, v2, 7, v3
s_lshl_b32 s44, s41, 13
s_add_u32 s44, s44, {XBASE}
v_add_u32 v{XA}, s44, v3''')
    for s_ in range(1, 4): a(f'v_xor_b32 v{XA+s_}, {32*s_}, v{XA}')
    a(f'''v_lshlrev_b32 v{VL}, 4, v0
v_and_b32 v4, 15, v0
v_xor_b32 v4, v4, v1
v_lshlrev_b32 v4, 4, v4
v_lshl_add_u32 v4, v2, 8, v4
s_mov_b32 s44, {KDST[0]}''')
    for p in range(1, 4): a(f's_cmp_eq_u32 s40, {p}\ns_cselect_b32 s44, {KDST[p]}, s44')
    a(f'''v_add_u32 v{KB}, s44, v4
s_lshl_b32 s44, s40, 11
s_add_u32 s44, s44, {PRING}
v_add_u32 v{PA}, s44, v{VL}
v_mov_b32 v{FA}, {F_FREE}
s_lshl_b32 s44, s40, 2
s_add_u32 s44, s44, {F_FREE}
v_mov_b32 v{FW}, s44
v_mov_b32 v{VN}, 0
s_waitcnt lgkmcnt(0)''')
    common_scalars()
    a('s_lshl_b32 s45, s41, 17\ns_lshl_b32 s44, s24, 1\ns_add_u32 s44, s44, s42\ns_lshl_b32 s44, s44, 11\ns_add_u32 s50, s45, s44\ns_add_u32 s50, s50, s48\ns_add_u32 s51, s50, 65536')
    a(f's_xor_b32 s44, s42, s49\ns_lshl_b32 s44, s44, 13\ns_lshl_b32 s45, s41, 12\ns_add_u32 s46, s44, s45\ns_add_u32 s46, s46, {PRING}')
    a(f's_lshl_b32 s57, s2, 2\ns_add_u32 s57, s57, s40\ns_lshl_b32 s57, s57, 7\ns_add_u32 s57, s57, {FLAG_OFF}')
    for jt in range(4): a(f's_add_u32 s44, s6, {jt+1}\ns_and_b32 s44, s44, 3\ns_lshl_b32 s{60+jt}, s44, 6')
    a('s_barrier')
    for i in range(128): a(f'v_mov_b32 v{ACC+i}, 0')
    a(f'ds_read_b128 {vr(FV)}, v{FA} offset:{O_FULL}\ns_waitcnt lgkmcnt(0)')
    for x in check(O_FULL, 1): a(x)
    st()
    def reads(ks):
        t = (ks // 2) % 6; ksub = ks % 2; buf = FB + (ks & 1) * 24
        wa = WA if t < 4 else WA2; wimm = WSLOT[t] - (0 if t < 4 else 65536)
        xs = (ks // 4) % 3
        r = []
        for mt in range(2):
            r.append(f'ds_read_b128 {vr(buf+16+4*mt)}, v{XA+ks%4} offset:{xs*16384+mt*4096}')
        for n_ in range(4):
            for u in range(2):
                r.append(f'ds_read_b64_tr_b16 {vr(buf+4*n_+2*u,2)}, v{wa+n_} offset:{wimm+(16*ksub+4*u)*512}')
        return [r[0], r[2], r[3], r[1]] + r[4:]
    def mf1(ks):
        buf = FB + (ks & 1) * 24
        return [f'v_mfma_f32_32x32x16_bf16 {vr(ACC+(mt*4+n_)*16,16)}, {vr(buf+4*n_)}, {vr(buf+16+4*mt)}, {vr(ACC+(mt*4+n_)*16,16)}' for n_ in range(4) for mt in range(2)]
    for x in reads(0): a(x)
    a('s_mov_b32 s58, 2\ns_waitcnt lgkmcnt(0)')
    a('L_g1:')
    for ks in range(12):
        gaps = [[] for _ in range(8)]
        rd = reads(ks + 1)
        if ks % 2 == 0:
            for i in range(5): gaps[i] = rd[2*i:2*i+2]
            gaps[4].append(f'ds_read_b128 {vr(FV)}, v{FA} offset:{O_FULL}')
            if ks == 10: gaps[5].append(f'ds_read_b128 {vr(F2)}, v{FA} offset:{O_FULL2}')
        else:
            gaps[0] = check(O_FULL, 's58')
            for i in range(5): gaps[i+1] = rd[2*i:2*i+2]
            gaps[6] += free()
            gaps[6].append('s_add_u32 s58, s58, 1')
        if ks == 10: gaps[6].append('s_cmp_eq_u32 s58, 19')
        for mm, g in zip(mf1(ks), gaps):
            a(mm)
            for x in g: a(x)
        a('s_waitcnt lgkmcnt(0)')
        if ks == 10: a('s_cbranch_scc1 L_g1x')
        st.dyn()
    a('s_branch L_g1\nL_g1x:')
    kq = []
    for s_ in range(8):
        kq.append(f'v_xor_b32 v{VT}, {32*s_}, v{KB}')
        for mt in range(2): kq.append(f'ds_read_b128 {vr(KR+(mt*8+s_)*4)}, v{VT} offset:{mt*8192}')
    m = mf1(11)
    a(m[0])
    for x in check(O_FULL2, 1, F2): a(x)
    a(f'ds_read_b32 v{FV}, v{FA} offset:{O_NONCE}')
    pre7 = f'v_xor_b32 v{FV+1}, {32*7}, v{KB}'
    kq = kq[:21] + [f'ds_read_b128 {vr(KR+(mt*8+7)*4)}, v{FV+1} offset:{mt*8192}' for mt in range(2)]
    a(pre7)
    per = 4
    for i in range(1, 8):
        a(m[i])
        for x in kq[(i-1)*per:i*per]: a(x)
    st(); st.val('s100'); st.val('s101')
    S = [FB, FB + 16]
    def cvts(n_):
        r = []
        for mt in range(2):
            c = ACC + (mt * 4 + n_) * 16
            r += [f'v_cvt_pk_bf16_f32 v{c+i}, v{c+2*i}, v{c+2*i+1}' for i in range(8)]
        return r
    for x in cvts(0): a(x)
    a(f's_waitcnt lgkmcnt(0)\nv_readfirstlane_b32 s56, v{FV}       ; tag')
    a(f'v_mov_b32 v{VN}, 19\ns_mov_b64 exec, 1\nds_write_b32 v{FW}, v{VN}\ns_mov_b64 exec, -1')
    a(f'ds_read_b128 {vr(FV)}, v{FA}')
    for n_ in range(4):
        nx = cvts(n_ + 1) if n_ < 3 else []
        k = 0
        for sp in range(2):
            for mt in range(2):
                c = ACC + (mt * 4 + n_) * 16 + 4 * sp
                src = '0' if (n_ == 0 and sp == 0) else vr(S[mt], 16)
                a(f'v_mfma_f32_32x32x16_bf16 {vr(S[mt],16)}, {vr(KR+(mt*8+2*n_+sp)*4)}, {vr(c)}, {src}')
                for x in nx[4*k:4*k+4]: a(x)
                k += 1
    A32 = 0; A16 = 64; OB = 72; VF = 136; PF = 152; PV = 160; WF = 192; SF = 224; VA = 232; WC = 236
    a(f's_mov_b32 s44, {hex(CEXP)}\ns_mov_b32 s45, {hex(CEXP)}')
    a(f'v_add_u32 v8, s46, v{VL}')
    a('s_waitcnt lgkmcnt(0)')
    for x in check(0, 17): a(x)
    for t in range(4): a(f'v_xor_b32 v{VA+t}, {64*t}, v{VBs}')
    for t in range(4): a(f'v_add_u32 v{WC+t}, s{60+t}, v{WBs}')
    st()
    M = [0, 4]
    for i in (0, 3, 5, 7, 9, 11, 13, 15):
        for mt in range(2):
            s = S[mt]; t = M[mt]
            if i == 0: a(f'v_max3_f32 v{t}, v{s}, v{s+1}, v{s+2}')
            elif i < 15: a(f'v_max3_f32 v{t}, v{t}, v{s+i}, v{s+i+1}')
            else: a(f'v_max_f32 v{t}, v{t}, v{s+15}')
    for mt in range(2): a(f'v_mov_b32 v{M[mt]+1}, v{M[mt]}')
    a('s_nop 0')
    for mt in range(2): a(f'v_permlane32_swap_b32 v{M[mt]}, v{M[mt]+1}')
    a('s_nop 0')
    for mt in range(2): a(f'v_max_f32 v{M[mt]}, v{M[mt]}, v{M[mt]+1}')
    for mt in range(2): a(f'v_mul_f32 v{M[mt]}, s44, v{M[mt]}')
    for mt in range(2):
        s = S[mt]; t = M[mt]
        for i in range(0, 16, 2): a(f'v_pk_fma_f32 {vr(s+i,2)}, {vr(s+i,2)}, s[44:45], {vr(t,2)} op_sel_hi:[1,0,0] neg_lo:[0,0,1] neg_hi:[0,0,1]')
        for i in range(16): a(f'v_exp_f32 v{s+i}, v{s+i}')
    for i in range(2, 16, 2):
        for mt in range(2):
            s = S[mt]; t = M[mt]
            if i == 2: a(f'v_pk_add_f32 {vr(t,2)}, {vr(s,2)}, {vr(s+2,2)}')
            else: a(f'v_pk_add_f32 {vr(t,2)}, {vr(t,2)}, {vr(s+i,2)}')
    for mt in range(2): a(f'v_add_f32 v{M[mt]}, v{M[mt]}, v{M[mt]+1}')
    for mt in range(2): a(f'v_mov_b32 v{M[mt]+1}, v{M[mt]}')
    a('s_nop 0')
    for mt in range(2): a(f'v_permlane32_swap_b32 v{M[mt]}, v{M[mt]+1}')
    a('s_nop 0')
    for mt in range(2): a(f'v_add_f32 v{M[mt]}, v{M[mt]}, v{M[mt]+1}')
    for mt in range(2): a(f'v_rcp_f32 v{M[mt]}, v{M[mt]}')
    for mt in range(2):
        s = S[mt]; t = M[mt]
        if mt == 0: a('s_nop 0')
        for i in range(0, 16, 2): a(f'v_pk_mul_f32 {vr(s+i,2)}, {vr(s+i,2)}, {vr(t,2)} op_sel_hi:[1,0]')
        for i in range(8): a(f'v_cvt_pk_bf16_f32 v{s+i}, v{s+2*i}, v{s+2*i+1}')
        for sp in range(2): a(f'ds_write_b128 v8, {vr(s+4*sp)} offset:{mt*2048+sp*1024}')
    for x in free(): a(x)
    a(f'ds_read_b128 {vr(FV)}, v{FA}\nds_read_b128 v[12:15], v{FA} offset:{O_FULL2}\nds_read_b128 v[16:19], v{FA} offset:{O_FULL}')
    for mt in range(2):
        for sp in range(2): a(f'buffer_store_dwordx4 {vr(S[mt]+4*sp)}, v{VL}, s[20:23], s{50+mt} offen offset:{sp*1024} sc1')
    for i in range(8): a(f'v_mov_b32 v{A16+i}, 0')
    st()
    a('s_waitcnt lgkmcnt(0)')
    for x in check(0, 20) + check(O_FULL2, 2, 12) + check(O_FULL, 19, 16): a(x)
    st(); st.val('s100'); st.val('s101')
    AHEAD = o.ahead; NWF = 8
    class T: pass
    tr = T(); tr.lg = []; tr.done = -1; tr.emit = True
    def out(x):
        if tr.emit: a(x)
    def lds(x, tag): out(x); tr.lg.append(tag)
    def wait_lds(*tags):
        last = max(j for j, t in enumerate(tr.lg) if t in tags)
        n = min(15, len(tr.lg) - 1 - last)
        if tr.done >= last: return
        out(f's_waitcnt lgkmcnt({n})'); tr.done = len(tr.lg) - 1 - n
    def pread(pos): return [(f'ds_read_b128 {vr(PF+4*s_)}, v{PA} offset:{(pos&1)*8192+s_*1024}', ('p', pos)) for s_ in range(2)]
    def vread(pos, t): return [(f'ds_read_b64_tr_b16 {vr(VF+(t&1)*8+4*s_+2*u,2)}, v{VA+t} offset:{(pos&1)*32768+(16*s_+8*u)*256}', ('v', pos, t)) for s_ in range(2) for u in range(2)]
    def pvm(pos, t):
        wait_lds(('p', pos), ('v', pos, t))
        c = vr(PV + (t & 1) * 16, 16)
        out(f'v_mfma_f32_32x32x16_bf16 {c}, {vr(VF+(t&1)*8)}, {vr(PF)}, 0')
        out(f'v_mfma_f32_32x32x16_bf16 {c}, {vr(VF+(t&1)*8+4)}, {vr(PF+4)}, {c}')
    def pvc(pos, t):
        s = PV + (t & 1) * 16; d = OB + (pos & 1) * 32 + t * 8
        return [f'v_cvt_pk_bf16_f32 v{d+i}, v{s+2*i}, v{s+2*i+1}' for i in range(8)]
    def wread(G):
        j = G % 8; b = (G // 8) % 2; u = (G // 16) % 2
        row = 32 * b + 16 * (j // 4)
        return [(f'ds_read_b64_tr_b16 {vr(WF+(G%NWF)*4+2*h,2)}, v{WC+j%4} offset:{u*DSLOT+(row+8*h)*320}', ('w', G)) for h in range(2)]
    def sread(B):
        u = (B // 2) % 4
        assert u * DSLOT + 40 * 320 < 65536 + 20000
        return [(f'ds_read_b64_tr_b16 {vr(SF+(B&1)*4+2*h,2)}, v{WSC} offset:{(u%2)*DSLOT+(32*(B&1)+8*h)*320}', ('s', B)) for h in range(2)]
    def swaps(B):
        f = OB + ((B // 4) & 1) * 32 + (B % 4) * 8
        return [f'v_permlane16_swap_b32 v{f+i}, v{f+4+i}' for i in range(4)]
    def smm(B, qt):
        wait_lds(('s', B))
        f = OB + ((B // 4) & 1) * 32 + (B % 4) * 8 + 4 * qt
        c = vr(A16 + 4 * qt)
        out(f'v_mfma_f32_16x16x32_bf16 {c}, {vr(SF+(B&1)*4)}, {vr(f)}, {c}')
    def step(G, first=False, last=False):
        pos = G // 32; J = G % 32; B = G // 8; j = G % 8
        wait_lds(('w', G))
        c = vr(A32 + (j % 4) * 16, 16)
        f = OB + (pos & 1) * 32 + (B % 4) * 8 + 4 * (j // 4)
        out(f'v_mfma_f32_32x32x16_bf16 {c}, {vr(WF+(G%NWF)*4)}, {vr(f)}, {"0" if first and G < 4 else c}')
        n = G + AHEAD
        if n < 256:
            if n % 16 == 0:
                wait_lds(('f', n // 16))
                if tr.emit:
                    for x in check(O_FULL, 's58'): a(x)
                out('s_add_u32 s58, s58, 1')
            if n % 32 == 0:
                d = hex(2 * DSLOT) if (n // 32) % 2 else hex((-2 * DSLOT) & 0xffffffff)
                for t in range(4): out(f'v_add_u32 v{WC+t}, {d}, v{WC+t}')
            for x, t in wread(n): lds(x, t)
            if (n + 3) % 16 == 0 and n + 3 < 256: lds(f'ds_read_b128 {vr(FV)}, v{FA} offset:{O_FULL}', ('f', (n + 3) // 16))
        if J % 8 == 7 and tr.emit and not first: st.dyn()
        if J % 16 == 15 and not last:
            out(f'v_add_u32 v{VN}, 1, v{VN}\ns_mov_b64 exec, 1'); lds(f'ds_write_b32 v{FW}, v{VN}', 'x'); out('s_mov_b64 exec, -1')
        if B > 0 and not (first and B == 0):
            if j == 0:
                for x in swaps(B - 1)[:2]: out(x)
            if j == 1:
                for x in swaps(B - 1)[2:]: out(x)
        if J == 2 and not first:
            d = hex(2 * DSLOT) if pos % 2 else hex((-2 * DSLOT) & 0xffffffff)
            out(f'v_add_u32 v{WSC}, {d}, v{WSC}')
        if J in (5, 10, 21, 26):
            for x, t in sread(B): lds(x, t)
        if B > 0 and not first:
            if j == 3: smm(B - 1, 0)
            if j == 4: smm(B - 1, 1)
        if not last:
            q = pos + 1
            if J == 12:
                for x, t in pread(q): lds(x, t)
            if J == 13:
                for x, t in vread(q, 0)[:2]: lds(x, t)
            if J == 14:
                for x, t in vread(q, 0)[2:]: lds(x, t)
            if J == 16:
                for x, t in vread(q, 1)[:1]: lds(x, t)
            if J == 17:
                for x, t in vread(q, 1)[1:2]: lds(x, t)
            if J == 18:
                for x, t in vread(q, 1)[2:]: lds(x, t)
            if J == 18:
                pvm(q, 0)
                for x, t in vread(q, 2): lds(x, t)
            if J == 22:
                pvm(q, 1)
                for x, t in vread(q, 3): lds(x, t)
            if J == 22:
                for x in pvc(q, 0)[:1]: out(x)
            if J == 23:
                for x in pvc(q, 0)[1:4]: out(x)
            if J == 24:
                for x in pvc(q, 0)[4:5]: out(x)
            if J == 26:
                for x in pvc(q, 0)[5:6]: out(x)
            if J == 27:
                for x in pvc(q, 0)[6:]: out(x)
            if J == 28:
                pvm(q, 2)
                for x in pvc(q, 1)[:5]: out(x)
            if J == 29:
                for x in pvc(q, 1)[5:]: out(x)
            if J == 30:
                pvm(q, 3)
            if J == 31:
                for x in pvc(q, 2)[:1]: out(x)
        if not first:
            if J == 2:
                for x in pvc(pos, 2)[1:3]: out(x)
            if J == 3:
                for x in pvc(pos, 2)[3:6]: out(x)
            if J == 4:
                for x in pvc(pos, 2)[6:] + pvc(pos, 3)[:1]: out(x)
            if J == 6:
                for x in pvc(pos, 3)[1:3]: out(x)
            if J == 7:
                for x in pvc(pos, 3)[3:6]: out(x)
            if J == 11:
                for x in pvc(pos, 3)[6:]: out(x)
        if G % 64 == o.pflag_G and tr.emit and not last:
            a(f's_cmp_lg_u32 s47, 0\ns_cbranch_scc1 L_nopf\ns_waitcnt vmcnt(0)\nv_mov_b32 v{VT}, s56\nv_mov_b32 v{VBs}, 0\ns_mov_b64 exec, 1')
            a(f'buffer_store_dword v{VT}, v{VBs}, s[20:23], s57 offen sc1\ns_mov_b64 exec, -1\nL_nopf:')
    for x, t in pread(0) + vread(0, 0) + vread(0, 1): lds(x, t)
    a('s_mov_b32 s58, 20\ns_mov_b32 s47, 0')
    pvm(0, 0)
    for x, t in vread(0, 2): lds(x, t)
    pvm(0, 1)
    for x, t in vread(0, 3): lds(x, t)
    if o.nruns == 4: lds(f'ds_read_b128 v[12:15], v{FA} offset:{O_FULL2}', 'f2')
    else: a('s_nop 0')
    a('s_nop 0')
    for x in pvc(0, 0): a(x)
    pvm(0, 2)
    for G in range(3):
        for x, t in wread(G): lds(x, t)
    for x in pvc(0, 1): a(x)
    pvm(0, 3)
    a(f'v_add_u32 v{VN}, 1, v{VN}\ns_mov_b64 exec, 1'); lds(f'ds_write_b32 v{FW}, v{VN}', 'x'); a('s_mov_b64 exec, -1')
    if o.nruns == 4:
        wait_lds('f2')
        for x in check(O_FULL2, 3, 12): a(x)
    for G in range(3, AHEAD):
        for x, t in wread(G): lds(x, t)
    for x in pvc(0, 2): a(x)
    for x in pvc(0, 3): a(x)
    for G in range(8): step(G, first=True)
    a('s_branch L_p2e')
    tr.emit = False
    for G in range(8, 64): step(G)
    tr.emit = True
    a('L_p2:')
    for G in range(64, 128):
        if G == 72: a('L_p2e:'); tr.done = -1
        step(G)
        if G == 95: a('s_cmp_eq_u32 s47, 3\ns_cbranch_scc1 L_p2x'); snap = (list(tr.lg), tr.done)
    a('s_add_u32 s47, s47, 1\ns_branch L_p2\nL_p2x:')
    st(); st.val('s100'); st.val('s101')
    sh = lambda t: (t[0], t[1] + (128 if t[0] == 'w' else 16 if t[0] == 's' else 8 if t[0] == 'f' else 4)) + t[2:] if isinstance(t, tuple) else t
    tr.lg = [sh(t) for t in snap[0]]; tr.done = snap[1]
    for G in range(224, 256): step(G, last=True)
    for x in swaps(31): a(x)
    a('s_nop 1')
    smm(31, 0); smm(31, 1)
    st()
    a('s_lshl_b32 s44, s5, 3\ns_add_u32 s44, s44, s7\ns_lshl_b32 s44, s44, 2\ns_add_u32 s44, s44, s24\ns_lshl_b32 s44, s44, 6')
    a('s_add_u32 s44, s44, s40')
    a('s_lshl_b32 s45, s6, 2\ns_add_u32 s45, s45, s44\ns_mul_i32 s45, s45, 3072')
    a(f's_add_u32 s45, s45, {X_OFF}')
    a('s_lshl_b32 s46, s6, 4\ns_add_u32 s46, s46, s44\ns_mul_i32 s46, s46, 3072')
    a(f's_add_u32 s46, s46, {X_OFF}')
    GS = 72; RM = 108; RC = 120
    for jt in range(3):
        a(f's_mul_i32 s44, s{60+jt}, {16*3072//64}\ns_add_u32 s{64+jt}, s44, s45\ns_mul_i32 s44, s{60+jt}, {4*3072//64}\ns_add_u32 s{68+jt}, s44, s46')
    for jt in range(3):
        for g in range(3): a(f'v_mov_b32 v{GS+12*jt+4*g+3}, s56')
    def gpos(i): return i + i // 3
    for jt in range(3):
        for i in range(6): a(f'v_cvt_pk_bf16_f32 v{GS+12*jt+gpos(i)}, v{16*jt+2*i}, v{16*jt+2*i+1}')
        for g in range(2): a(f'buffer_store_dwordx4 {vr(GS+12*jt+4*g)}, v{VL}, s[20:23], s{64+jt} offen offset:{g*1024} sc1')
    for i in range(4): a(f'v_cvt_pk_bf16_f32 v{RM+i}, v{A16+2*i}, v{A16+2*i+1}')
    a('s_add_u32 s44, s6, 1\ns_bitcmp1_b32 s44, 1\ns_cselect_b64 s[72:73], -1, 0\ns_bitcmp1_b32 s44, 0\ns_cselect_b64 s[74:75], -1, 0')
    for i in range(4): a(f'v_cndmask_b32 v{RM+4+i}, v{RM+i}, v{RM+(i+2)%4}, s[72:73]')
    for i in range(4): a(f'v_cndmask_b32 v{RM+i}, v{RM+4+i}, v{RM+4+(i+1)%4}, s[74:75]')
    for jt in range(3):
        for i in (6, 7): a(f'v_cvt_pk_bf16_f32 v{GS+12*jt+gpos(i)}, v{16*jt+2*i}, v{16*jt+2*i+1}')
        a(f'v_mov_b32 v{GS+12*jt+10}, v{RM+jt}')
        a(f'buffer_store_dwordx4 {vr(GS+12*jt+8)}, v{VL}, s[20:23], s{64+jt} offen offset:2048 sc1')
    st()
    a('s_mov_b32 s59, 0\nL_xpoll:')
    for k in range(3):
        for g in range(3): a(f'buffer_load_dwordx4 {vr(RC+12*k+4*g)}, v{VL}, s[20:23], s{68+k} offen offset:{g*1024} sc1')
    ZZ = 160
    a(f'''s_add_u32 s59, s59, 1
s_mov_b32 s64, s52
s_mov_b32 s65, s53
s_mov_b32 s66, 2359296
s_mov_b32 s67, 0x20000
s_lshl_b32 s44, s7, 2
s_add_u32 s44, s44, s40
s_mul_i32 s44, s44, 73728
s_mul_i32 s45, s5, 1152
s_add_u32 s44, s44, s45
s_mul_i32 s45, s24, 288
s_add_u32 s44, s44, s45
s_add_u32 s45, s44, s63
s_lshr_b32 s46, s6, 1
s_mul_i32 s46, s46, 36864
s_add_u32 s46, s46, s44
s_and_b32 s47, s6, 1
s_lshl_b32 s47, s47, 2
s_add_u32 s46, s46, s47
s_add_u32 s46, s46, 256
s_mov_b32 s58, 0xffff0000
v_lshrrev_b32 v{ZZ}, 4, v{VL}       ; lane
v_and_b32 v{ZZ+1}, 31, v{ZZ}
v_mul_u32_u24 v{ZZ+1}, 2304, v{ZZ+1}
v_lshrrev_b32 v{ZZ+2}, 5, v{ZZ}
v_lshl_add_u32 v{ZZ+1}, v{ZZ+2}, 4, v{ZZ+1}
v_and_b32 v{ZZ+2}, 15, v{ZZ}
v_mul_u32_u24 v{ZZ+2}, 2304, v{ZZ+2}
v_lshrrev_b32 v{ZZ+3}, 4, v{ZZ}
v_lshl_add_u32 v{ZZ+2}, v{ZZ+3}, 3, v{ZZ+2}
s_waitcnt vmcnt(0)''')
    tg = [RC + 12 * k + 4 * g + 3 for k in range(3) for g in range(3)]
    a(f'v_min3_u32 v{ZZ+4}, v{tg[0]}, v{tg[1]}, v{tg[2]}\nv_max3_u32 v{ZZ+5}, v{tg[0]}, v{tg[1]}, v{tg[2]}')
    for i in (3, 5, 7): a(f'v_min3_u32 v{ZZ+4}, v{ZZ+4}, v{tg[i]}, v{tg[i+1]}\nv_max3_u32 v{ZZ+5}, v{ZZ+5}, v{tg[i]}, v{tg[i+1]}')
    a(f'''v_cmp_ne_u32 vcc, s56, v{ZZ+4}
v_cmp_ne_u32 s[72:73], s56, v{ZZ+5}
s_nop 0
s_or_b64 vcc, vcc, s[72:73]
s_cbranch_vccz L_xgo
s_cmp_lt_u32 s59, {SPIN}
s_cbranch_scc1 L_xpoll
L_xgo:''')
    st()
    OWN = 48
    a(f'v_lshlrev_b32 v{ZZ+6}, 16, v{RM+3}\nv_and_b32 v{ZZ+7}, s58, v{RM+3}')
    for k in range(3):
        for i in range(9):
            s = RC + 12 * k + gpos(i)
            d = vr(OWN + 2 * i, 2) if i < 8 else vr(ZZ + 6, 2)
            tmp = ZZ + 8 + 2 * (i % 2)
            a(f'v_lshlrev_b32 v{tmp}, 16, v{s}\nv_and_b32 v{tmp+1}, s58, v{s}\nv_pk_add_f32 {d}, {d}, {vr(tmp,2)}')
    for i in range(8): a(f'v_cvt_pk_bf16_f32 v{OWN+i}, v{OWN+2*i}, v{OWN+2*i+1}')
    a(f'v_cvt_pk_bf16_f32 v{ZZ+6}, v{ZZ+6}, v{ZZ+7}\ns_nop 0')
    for h in range(2):
        a(f'v_permlane32_swap_b32 v{OWN+4*h}, v{OWN+4*h+2}\nv_permlane32_swap_b32 v{OWN+4*h+1}, v{OWN+4*h+3}')
    for h in range(2): a(f'buffer_store_dwordx4 {vr(OWN+4*h)}, v{ZZ+1}, s[64:67], s45 offen offset:{32*h}{o.out_flags}')
    a(f'buffer_store_dword v{ZZ+6}, v{ZZ+2}, s[64:67], s46 offen{o.out_flags}')
    if o.stamp:
        st(); a('s_waitcnt vmcnt(0)'); st(); st.flush()
    if o.amp:
        a(f'''s_waitcnt vmcnt(0)
s_memrealtime s[82:83]
s_waitcnt lgkmcnt(0)
s_sub_u32 s84, s82, s94
s_mul_i32 s84, s84, {o.amp}
L_amp:
s_memrealtime s[80:81]
s_waitcnt lgkmcnt(0)
s_sub_u32 s85, s80, s82
s_cmp_lt_u32 s85, s84
s_cbranch_scc1 L_amp''')
    a('s_endpgm')
    for x in slow: a(x)
    a('.p2align 2\nL_tbl:\n.long ' + ','.join(str(i) for i in range(64)))
    a('.section .rodata,"a"')
    a(kd(name, 256))
    return a.text()

if __name__ == '__main__':
    t = gen()
    e = hazard.check(t)
    print(len(e), 'hazards'); print('\n'.join(e[:40]))
    open(sys.argv[1], 'w').write(t)
```

```python
R, V = 8, 4
class Task:
    def __init__(self, text, cost, early, late, tag=None, name=None, after=None, gapafter=0):
        self.text = text; self.cost = cost; self.early = early; self.late = late
        self.tag = tag
        self.name = name; self.after = after; self.gapafter = gapafter; self.slot = None
def place(slots, tasks, reserve):
    byname = {t.name: t for t in tasks if t.name}
    out = [[] for _ in slots]
    left = list(tasks)
    for k, cap in enumerate(slots):
        room = cap - reserve.get(k, 0)
        while True:
            c = [t for t in left if t.early <= k and (t.after is None or (byname[t.after].slot is not None and byname[t.after].slot + t.gapafter <= k))]
            c = [t for t in c if t.cost <= room or t.late <= k]
            if not c: break
            t = min(c, key=lambda t: (t.late, left.index(t)))
            t.slot = k; out[k].append(t); left.remove(t); room -= t.cost
    assert not left, [(t.text, t.early, t.late) for t in left]
    return out
```

```python
import sys
from asm import *
import hazard
from gen3 import Stamper, srd, nt, vr
from gen2 import VM
from sched import Task, place, R, V

P_OFF = 0
FLAG_OFF = 4 << 20
X_OFF = 8 << 20
WS_SIZE = 32 << 20
CEXP = 0x3e0293ee
WSLOT = [32768, 49152, 65536, 131072, 147456]
XSLOT = [0, 16384, 81920]
F_TAG = 0
PRING = 81920; VBASE = 98304; DSLOT = 20480
SPIN = 0x40000

class Opt:
    nt_k = True; nt_v = False; nt_wq = False; nt_wo = False; nt_x = False
    stamp = 0
    rot1 = 2
    runs = [(1, 5, 6, 9, 10), (3, 7, 8, 11, 12)]
    amp = 0
    out_flags = ''
    first = ('X0', 'W0', 'W1', 'X1')
    bud0 = 12; bud = 8; defer = (); split = False; vsplit = True
    late = {14: ('V1',), 16: ('O0',), 17: ('O1', 'O2', 'O3')}
    p2_at = 1
    stop1 = False
    pst = ' sc1'
    pre = 0
    subx = ''
    touch = True
    codepf = 1
    verbose = False
    bar1 = 9
    pvat = (16, 17, 20, 21, 24, 25, 26, 28)
    bar2 = 27
    ah = 7
    c2split = 8
    tpv = (9, 10, 12, 13, 16, 17, 19, 20)
    tb14 = 12; tb15 = 17
    xl = (57, 60, 63)
    noruns = False
    amp_from = 'start'; amp_to = 'end'
    prio = 0
    noruns = False

def gen(o=Opt):
    a = A()
    name = KN + '_kernel'
    a('; @launch grid=(256,1,1) block=(512,1,1) lds=163840')
    a('.amdgcn_target "amdgcn-amd-amdhsa--gfx950"\n.text')
    a(head(name))
    st = Stamper(a, int(o.stamp))
    VX = 2; VW = 6; VK = 10; VV = 14; VO = 15; VLp = 20; VZ = 21
    assert XSLOT[0] == 0 and WSLOT[0] == 32768
    rot = {0: 's_mov_b32 s46, 0',
           1: 's_and_b32 s46, s4, 3\ns_lshl1_add_u32 s46, s46, s7\ns_sub_u32 s47, s46, 9\ns_cselect_b32 s46, s46, s47',
           2: 's_add_u32 s46, s4, s7\ns_and_b32 s46, s46, 1\ns_lshl_b32 s46, s46, 2',
           4: 's_add_u32 s46, s4, s7\ns_and_b32 s46, s46, 3\ns_lshl_b32 s46, s46, 1'}[o.rot1]
    a(f'''s_and_b32 s25, s2, 4
s_mul_i32 s25, s25, 10                   ; branch * 40
s_load_dwordx8 s[28:35], s[0:1], s25     ; x k v wq
{'s_memrealtime s[92:93]' if o.stamp else 's_lshr_b32 s3, s2, 8' + chr(10) + 's_cbranch_scc1 L_end'}
v_lshrrev_b32 v1, 6, v0
v_and_b32 v0, 63, v0
v_readfirstlane_b32 s40, v1
s_lshr_b32 s7, s2, 5          ; bg
s_lshr_b32 s4, s2, 3
{o.subx}{rot}
v_lshrrev_b32 v24, 3, v0
v_lshrrev_b32 v25, 4, v0
v_and_b32 v26, 7, v0
v_xor_b32 v26, v26, v25
v_mul_u32_u24 v24, 1152, v24
v_lshl_add_u32 v{VX}, v26, 4, v24
v_xor_b32 v{VX+1}, 64, v{VX}
v_add_u32 v{VX+1}, 8192, v{VX+1}
s_lshl3_add_u32 s44, s7, s40
s_mul_i32 s44, s44, {16*1152}
s_lshl_b32 s45, s46, 7
s_add_u32 s44, s44, s45
s_lshl_b32 m0, s40, 11
v_lshrrev_b32 v24, 5, v0
v_and_b32 v26, 31, v0
v_lshlrev_b32 v27, 2, v24
v_xor_b32 v26, v26, v27
v_lshlrev_b32 v26, 4, v26
v_lshl_add_u32 v{VW}, v24, 13, v26
v_xor_b32 v26, 128, v{VW}
v_add_u32 v{VW+1}, 15360, v26
s_and_b32 s6, s2, 3           ; hg
s_and_b32 s24, s4, 3          ; sub
s_lshl2_add_u32 s43, s6, s24
s_lshl4_add_u32 s45, s46, s40
s_lshl_b32 s45, s45, 6
s_add_u32 s45, s45, s43
s_lshl_b32 s45, s45, 9
s_waitcnt lgkmcnt(0)
s_add_u32 s8, s28, s44
s_addc_u32 s9, s29, 0
global_load_lds_dwordx4 v{VX}, s[8:9]{nt(o.nt_x)}
global_load_lds_dwordx4 v{VX+1}, s[8:9] offset:1024{nt(o.nt_x)}
s_bitset1_b32 m0, 15
s_add_u32 s12, s34, s45
s_addc_u32 s13, s35, 0
global_load_lds_dwordx4 v{VW}, s[12:13]{nt(o.nt_wq)}
global_load_lds_dwordx4 v{VW+1}, s[12:13] offset:1024{nt(o.nt_wq)}
L_first:
{'v_writelane_b32 v255, s92, 0' + chr(10) + 'v_writelane_b32 v255, s92, 1' if o.stamp else ''}
s_add_u32 s25, s25, 32
s_load_dwordx2 s[36:37], s[0:1], s25     ; wo
s_load_dwordx4 s[52:55], s[0:1], 80
s_load_dwordx2 s[38:39], s[0:1], 96      ; ws
s_lshl_b32 s43, s43, 1
s_bfe_u32 s5, s2, 0x10002      ; branch''')
    st.n = 1
    if Stamper.RT: st.n = 2
    else: st()
    def pt(nm):
        if o.amp and o.amp_from == nm: a('s_memrealtime s[94:95]\ns_waitcnt lgkmcnt(0)')
        if o.amp and o.amp_to == nm: a('s_memrealtime s[96:97]\ns_waitcnt lgkmcnt(0)')
    pt('start')
    a('s_cmp_lt_u32 s40, 4\ns_cbranch_scc1 L_cons')
    for b0, c0, b1, c1, b2 in o.runs: assert c0 % 2 == 1 and c1 % 2 == 1 and b0 < c0 < b1 < c1 < b2 <= 17 and c1 <= 13
    ncls = len(o.runs)
    assert not any('O0' in v for k, v in o.late.items() if k < 16)

    def common_scalars():
        a(f's_mov_b32 s20, s38\ns_mov_b32 s21, s39\ns_mov_b32 s22, {WS_SIZE}\ns_mov_b32 s23, 0x20000')
        a('s_lshl_b32 s48, s5, 5\ns_lshl_b32 s44, s7, 2\ns_add_u32 s48, s48, s44\ns_lshl_b32 s48, s48, 5\ns_lshl_b32 s44, s6, 3\ns_add_u32 s48, s48, s44\ns_lshl_b32 s48, s48, 11')
        if P_OFF: a(f's_add_u32 s48, s48, {P_OFF}')
        a('s_and_b32 s49, s7, 1')
    def cls_index():
        if ncls == 2: a('s_lshr_b32 s44, s7, 1\ns_and_b32 s44, s44, 1')
        elif ncls == 4: a('s_lshr_b32 s44, s7, 1')
        else: assert ncls == 1
    def cls_select(dst, vals):
        a(f's_mov_b32 s{dst}, {vals[0]}')
        for c in range(1, ncls): a(f's_cmp_eq_u32 s44, {c}\ns_cselect_b32 s{dst}, {vals[c]}, s{dst}')

    a('s_sub_u32 s41, s40, 4          ; p')
    if o.prio: a(f's_setprio {o.prio}')
    a(f'''s_mul_i32 s42, s41, {32*1152}
v_add_u32 v{VX}, s42, v{VX}
v_add_u32 v{VX+1}, s42, v{VX+1}
v_add_u32 v{VX+2}, 16384, v{VX}
v_add_u32 v{VX+3}, 16384, v{VX+1}
s_lshl_b32 s42, s41, 16
v_add_u32 v{VW}, s42, v{VW}
v_add_u32 v{VW+1}, s42, v{VW+1}
v_add_u32 v{VW+2}, 30720, v{VW}
v_add_u32 v{VW+3}, 30720, v{VW+1}
s_lshl_b32 s42, s41, 12         ; p*4096 lds''')
    a('s_mul_i32 s44, s7, %d\ns_lshl_b32 s45, s43, 8' % (128 * 1152))
    srd(a, 8, 28, 44, 1179648); srd(a, 12, 34, 45, 4718592)
    vm = VM()
    HS = {0: 64, 1: 65}; HS.update({2 + i: 82 + i for i in range(6)})
    def ldX(S):
        a(f's_add_u32 m0, s42, {XSLOT[S % 3]}')
        a('s_lshl_b32 s44, s47, 7')
        for i in range(4): a(f'buffer_load_dwordx4 v{VX+i}, s[8:11], s44 offen offset:{1024*i}{nt(o.nt_x)} lds')
        a('s_add_u32 s47, s47, 1\ns_cmp_eq_u32 s47, 9\ns_cselect_b32 s47, 0, s47')
        vm.add(('X', S), 4)
    def ldW(t):
        a(f's_add_u32 m0, s42, {WSLOT[t % 5]}')
        a('s_lshl_b32 s44, s46, 19' if t % 2 == 0 else 's_lshl_b32 s44, s46, 19\ns_add_u32 s44, s44, 262144')
        for i in range(4): a(f'buffer_load_dwordx4 v{VW+i}, s[12:15], s44 offen offset:{1024*i}{nt(o.nt_wq)} lds')
        if t % 2: a('s_add_u32 s46, s46, 1\ns_cmp_eq_u32 s46, 9\ns_cselect_b32 s46, 0, s46')
        vm.add(('W', t), 4)
    def ldK(r, gs=(0, 1)):
        for g in gs:
            a(f's_add_u32 m0, s68, {g * 4096}')
            a(f's_add_u32 s44, s50, {r*262144+g*4096}')
            for i in range(4): a(f'buffer_load_dwordx4 v{VK+i}, s[16:19], s44 offen offset:{1024*i}{nt(o.nt_k)} lds')
            vm.add(('K', r), 4)
    def ldWo(u):
        a(f's_add_u32 m0, s69, {(u % 4) * DSLOT}')
        a(f's_mul_i32 s44, s{HS[u//2]}, {128*1152}')
        if u % 2: a(f's_add_u32 s44, s44, {64*1152}')
        for i in range(4): a(f'buffer_load_dwordx4 v{VO+i}, s[56:59], s44 offen offset:{1024*i}{nt(o.nt_wo)} lds')
        a(f's_add_u32 m0, s69, {(u % 4) * DSLOT + 4096}\ns_nop 0')
        a(f'buffer_load_dwordx4 v{VO+4}, s[56:59], s44 offen{nt(o.nt_wo)} lds')
        vm.add(('O', u), 5)
    def ldWoR(i):
        a(f's_add_u32 s45, s7, {i}\ns_and_b32 s45, s45, 3')
        a('s_lshr_b32 s44, s45, 1\ns_lshl1_add_u32 s44, s24, s44')
        a('s_lshl_b32 s3, s49, 1\ns_xor_b32 s3, s3, s45            ; u = k ^ (2*parity)')
        a(f's_mul_i32 s3, s3, {DSLOT}\ns_add_u32 m0, s69, s3')
        a(f's_and_b32 s45, s45, 1\ns_lshl1_add_u32 s44, s44, s45\ns_mul_i32 s44, s44, {64*1152}')
        for k in range(4): a(f'buffer_load_dwordx4 v{VO+k}, s[56:59], s44 offen offset:{1024*k}{nt(o.nt_wo)} lds')
        a(f's_add_u32 m0, m0, 4096\ns_nop 0')
        a(f'buffer_load_dwordx4 v{VO+4}, s[56:59], s44 offen{nt(o.nt_wo)} lds')
        vm.add(('O', 0), 5)
    def ldV(pos, gs=(0, 1)):
        for g in gs:
            a(f's_add_u32 m0, s68, {(pos & 1) * 32768 + g * 4096}')
            a(f's_lshl_b32 s44, s{HS[pos]}, 13\ns_add_u32 s44, s44, s67')
            if g: a('s_add_u32 s44, s44, 4096')
            for i in range(4): a(f'buffer_load_dwordx4 v{VV}, s[60:63], s44 offen offset:{1024*i}{nt(o.nt_v)} lds')
            vm.add(('V', pos), 4)
    def ldP(pos):
        a(f's_add_u32 m0, s70, {(pos & 1) * 8192}')
        a(f's_lshl_b32 s44, s{HS[pos]}, 11\ns_add_u32 s44, s44, s71')
        for i in range(2): a(f'buffer_load_dwordx4 v{VLp}, s[20:23], s44 offen offset:{1024*i} sc1 lds')
        vm.add(('P', pos), 2)
    def bar(tags):
        n = vm.wait_for(tags)
        st(lvl=2)
        if n is not None: a(f's_waitcnt vmcnt({n})')
        st(lvl=2)
        a('s_barrier')
    vm.add(('X', 0), 2); vm.add(('W', 0), 2)
    a('s_add_u32 s47, s46, 1\ns_cmp_eq_u32 s47, 9\ns_cselect_b32 s47, 0, s47')
    if st.on >= 4:
        for n in (4, 3, 2, 1, 0):
            a(f's_waitcnt vmcnt({n})'); st()
    for x in o.first[2:]: (ldX if x[0] == 'X' else ldW)(int(x[1:]))
    a('s_waitcnt lgkmcnt(0)')
    def setup_k():
        a('s_lshl_b32 s44, s7, 7\ns_add_u32 s44, s44, s43\ns_lshl_b32 s44, s44, 13'); srd(a, 16, 30, 44, 8388608)
        a('v_lshrrev_b32 v24, 4, v0\nv_and_b32 v26, 15, v0\nv_xor_b32 v27, v26, v24\nv_lshlrev_b32 v27, 4, v27')
        a(f'v_lshl_add_u32 v{VK}, v24, 8, v27')
        for i in range(1, 4): a(f'v_xor_b32 v{VK+i}, {64*i}, v{VK}')
        a(f'v_lshlrev_b32 v28, 2, v24\nv_xor_b32 v28, v28, v26\nv_lshlrev_b32 v28, 4, v28\nv_lshl_add_u32 v{VV}, v24, 8, v28')
        a('s_and_b32 s44, s41, 1\ns_lshl_b32 s44, s44, 19\ns_lshr_b32 s45, s41, 1\ns_lshl_b32 s45, s45, 13\ns_add_u32 s50, s44, s45')
        a(f's_lshl_b32 s68, s41, 13\ns_add_u32 s68, s68, {VBASE}     ; V / K lds')
    def setup_n0():
        common_scalars()
        a(f'v_lshlrev_b32 v{VLp}, 4, v0\nv_mov_b32 v{VZ}, 0')
        a(f's_lshl_b32 s88, s2, 7\ns_add_u32 s88, s88, {FLAG_OFF}')
        a(f's_mov_b64 exec, 1\nbuffer_load_dword v22, v{VZ}, s[20:23], s88 offen sc1\ns_mov_b64 exec, -1'); vm.add('N0')
        a('s_lshl_b32 s44, s7, 7\ns_lshl_b32 s45, s6, 3\ns_add_u32 s44, s44, s45\ns_lshl_b32 s44, s44, 13'); srd(a, 60, 32, 44, 8388608)
        a('s_lshl_b32 s44, s24, 1\ns_add_u32 s64, s44, s49\ns_xor_b32 s65, s64, 1')
        a('s_lshl_b32 s67, s41, 18         ; p*262144 (V batch)')
    def setup_n1():
        a('s_mov_b32 s32, s54\ns_mov_b32 s33, s55\ns_mov_b32 s34, 256\ns_mov_b32 s35, 0x20000')
        a('s_lshl_b32 s44, s5, 3\ns_add_u32 s44, s44, s7\ns_lshl_b32 s44, s44, 4')
        a('s_cmp_eq_u32 s41, 0\ns_cselect_b32 s51, s44, 0x1000')
        a(f's_waitcnt vmcnt({vm.wait_for({"N0"})})')
        a('v_add_u32 v22, 1, v22\nv_max_u32 v22, 1, v22\nv_mov_b32 v23, 0\nv_mov_b32 v29, v22\ns_mov_b64 exec, 1')
        a(f'buffer_atomic_cmpswap v[22:23], v{VZ}, s[32:35], s51 offen sc0\ns_mov_b64 exec, -1'); vm.add('N1')
        a('s_mul_i32 s44, s6, %d\ns_mul_i32 s45, s24, 288\ns_add_u32 s44, s44, s45' % (1024 * 1152))
        srd(a, 56, 36, 44, 4718592)
    def setup_o(r):
        a('s_mul_i32 s44, s41, 320')
        for i in r:
            a(f'v_add_u32 v26, {64*i}, v0\nv_add_u32 v26, s44, v26\nv_mul_u32_u24 v27, 3277, v26\nv_lshrrev_b32 v27, 16, v27')
            a(f'v_mul_u32_u24 v28, 20, v27\nv_sub_u32 v26, v26, v28\nv_min_u32 v26, 17, v26\nv_mul_u32_u24 v27, 1152, v27\nv_lshl_add_u32 v27, v26, 4, v27')
            a(f'v_subrev_u32 v{VO+i}, {1024*(i%4)}, v27')
    def setup_h():
        a('s_sub_u32 s44, s7, 6\ns_cmp_ge_u32 s7, 6\ns_cselect_b32 s45, s44, s7')
        for i in range(6):
            a(f's_lshl_b32 s44, s24, 1\ns_add_u32 s44, s44, s45\ns_add_u32 s44, s44, 2\ns_and_b32 s{82+i}, s44, 7')
            if i < 5: a('s_add_u32 s45, s45, 1\ns_cmp_eq_u32 s45, 6\ns_cselect_b32 s45, 0, s45')
    def setup_p():
        a('s_mul_i32 s69, s41, 5120')
        a(f's_lshl_b32 s70, s41, 11\ns_add_u32 s70, s70, {PRING}      ; P lds')
        a('s_lshl_b32 s71, s41, 16\ns_add_u32 s71, s71, s48')
    setup_k()
    def tag_out():
        a(f's_waitcnt vmcnt({vm.wait_for({"N1"})})\nv_cmp_eq_u32 vcc, 0, v22\ns_cmp_eq_u32 s41, 0\ns_cselect_b32 s89, s88, {WS_SIZE}\nv_cndmask_b32 v22, v22, v29, vcc')
        a(f's_mov_b64 exec, 1\nbuffer_store_dword v22, v{VZ}, s[20:23], s89 offen sc1\ns_mov_b64 exec, -1'); vm.add('N2')
    def tag_dma():
        a(f's_cmp_lg_u32 s41, 0\ns_cbranch_scc1 L_td{tag_dma.n}\ns_mov_b32 m0, {F_TAG}\ns_mov_b64 exec, 1')
        a(f'buffer_load_dword v{VZ}, s[20:23], s88 offen sc1 lds\ns_mov_b64 exec, -1\nL_td{tag_dma.n}:')
        tag_dma.n += 1
    tag_dma.n = 0
    def tag_check(c):
        a(f'''s_cmp_lg_u32 s41, 0
s_cbranch_scc1 L_tc{c}x
s_mov_b32 s89, 0
s_waitcnt vmcnt({sum(1 for x in vm.ops[tag_check.at:])})
L_tc{c}:
ds_read_b32 v23, v{VZ} offset:{F_TAG}
s_add_u32 s89, s89, 1
s_waitcnt lgkmcnt(0)
v_cmp_ne_u32 vcc, v22, v23
s_nop 0
s_bitcmp0_b32 vcc_lo, 0
s_cbranch_scc1 L_tc{c}x
s_mov_b32 m0, {F_TAG}
s_mov_b64 exec, 1
buffer_load_dword v{VZ}, s[20:23], s88 offen sc1 lds
s_mov_b64 exec, -1
s_waitcnt vmcnt(0)
s_cmp_lt_u32 s89, {SPIN}
s_cbranch_scc1 L_tc{c}
L_tc{c}x:''')
    def patterns(dst, tag, lane3, tmp):
        r = [f'v_mul_u32_u24 v{tmp}, 0x55, v{lane3}', f'v_add_u32 v{tmp}, {tag}, v{tmp}']
        for j in range(4):
            r += [f'v_lshlrev_b32 v{dst+j}, {15-2*j}, v{tmp}', f'v_and_b32 v{dst+j}, 0x8000, v{dst+j}',
                  f'v_lshlrev_b32 v{tmp+1}, {30-2*j}, v{tmp}', f'v_and_b32 v{tmp+1}, 0x80000000, v{tmp+1}', f'v_or_b32 v{dst+j}, v{dst+j}, v{tmp+1}']
        return r
    extra = {0: setup_n0, 2: setup_n1, 4: lambda: setup_o((0, 1, 2)), 6: lambda: setup_o((3, 4)), 8: setup_h, 10: setup_p, 9: tag_out}
    cls_index()
    for c in range(1, ncls): a(f's_cmp_eq_u32 s44, {c}\ns_cbranch_scc1 L_cls{c}')
    pre = list(vm.ops); n0 = st.n
    for c in range(ncls):
        if c: a(f'L_cls{c}:')
        vm.ops = list(pre); st.n = n0
        b0, c0, b1, c1, b2 = o.runs[c]
        todo = [(t - 1, t - 5, 'W', t) for t in range(18)] + [(2 * S - 1, 2 * S - 5, 'X', S) for S in range(9)]
        todo = sorted(x for x in todo if f'{x[2]}{x[3]}' not in o.first)
        for t in range(-1, 18):
            tags = {('W', t + 1), ('X', (t + 1) // 2)}
            if t == c0: tags.add(('K', 0))
            if t == c1: tags.add(('K', 1))
            assert all(x[0] > t for x in todo)
            if t == 15: tag_check(c)
            if t == 16: a('s_waitcnt lgkmcnt(0)')
            bar(tags if t < 17 else set())
            if t == 13: tag_dma(); tag_check.at = len(vm.ops)
            if t == 15: a(f'ds_read_b32 v22, v{VZ} offset:{F_TAG}')
            rs = () if o.noruns else (b0, b1, b2)
            budget = o.bud0 if t == -1 else o.bud
            for k, v in enumerate(o.defer):
                if t - k in rs: budget = min(budget, v)
            if o.pre and t + 1 in rs: budget = 0
            if o.pre and t in rs: budget = o.pre
            while todo and todo[0][1] <= t and (budget >= 4 or todo[0][0] <= t + 1):
                x = todo.pop(0); budget -= 4
                (ldX if x[2] == 'X' else ldW)(x[3])
            for k, b in enumerate(rs):
                f = (lambda gs: ldK(k, gs)) if k < 2 else (lambda gs: ldV(0, gs))
                if t == b: f((0,) if o.split else (0, 1))
                if t == b + 1 and o.split: f((1,))
            if t in extra: extra[t]()
            for x in o.late.get(t, ()): {'V': ldV, 'O': ldWo, 'R': ldWoR}[x[0]](int(x[1:]))
        if o.stop1: st.flush(); st.on = st.on0; a('s_endpgm'); continue
        a('v_and_b32 v24, 3, v0')
        for x in patterns(32, 'v22', 24, 26): a(x)
        a(f'v_add_u32 v25, s70, v{VLp}\ns_mov_b32 s43, 0x80008000')
        bar({('O', 0), ('V', 0)})
        k0 = max(i for i, x in enumerate(vm.ops) if x in (('O', 0), ('V', 0)))
        tail = vm.ops[k0 + 1:]
        if c: assert tail == tail0
        tail0 = tail
        if c + 1 < ncls: a('s_branch L_ph2')
    a('L_ph2:')
    if not o.stop1:
        vm.ops = list(tail0)
        for x in o.late.get(18, ()): {'V': ldV, 'O': ldWo, 'R': ldWoR}[x[0]](int(x[1:]))
        def verify(q):
            a(f's_mov_b32 s89, 0\ns_waitcnt vmcnt({vm.wait_for({("P", q)})})\nL_vf{q}:')
            for h in range(2): a(f'ds_read_b128 {vr(40+4*h)}, v25 offset:{(q&1)*8192+h*1024}')
            a('s_add_u32 s89, s89, 1\ns_waitcnt lgkmcnt(0)')
            for i in range(8): a(f'v_xor_b32 v{40+i}, v{40+i}, v{32+i%4}')
            a('v_or3_b32 v40, v40, v41, v42\nv_or3_b32 v43, v43, v44, v45\nv_or3_b32 v40, v40, v46, v47\nv_or_b32 v40, v40, v43\nv_and_b32 v40, s43, v40')
            a(f'v_cmp_ne_u32 vcc, 0, v40\ns_cbranch_vccz L_vf{q}x')
            keep = list(vm.ops); ldP(q); vm.ops = keep
            a(f's_waitcnt vmcnt(0)\ns_cmp_lt_u32 s89, {SPIN}\ns_cbranch_scc1 L_vf{q}\nL_vf{q}x:')
            st(lvl=2)
        for u in range(1, 16):
            tags = {('O', u)}
            if u % 2:
                tags |= {('V', (u + 1) // 2)}
            bar(tags)
            if u == 1: ldV(2)
            if u == o.p2_at: ldP(2)
            if u == 2: verify(2)
            if 4 <= u + 2 <= 15: ldWo(u + 2)
            if u % 2 == 0 and u // 2 + 2 <= 7: ldP(u // 2 + 2); ldV(u // 2 + 2, (0,) if o.vsplit else (0, 1))
            if u % 2 == 1 and u >= 3 and u // 2 + 2 <= 7 and o.vsplit: ldV(u // 2 + 2, (1,))
            if u % 2 == 1 and 3 <= (u + 3) // 2 <= 7: verify((u + 3) // 2)
        st.flush()
    a('L_end:\ns_endpgm')

    a('L_cons:')
    st.n = 2; st.on = st.on0
    if o.stamp: a('s_mov_b32 m0, 0\ns_mov_b32 s90, s92')
    ACC = 0; FB = 128; KR = 176; WA = 240; XA = 244; VL = 248; KB = 249; VT = 250
    for i in range(8, 128): a(f'v_mov_b32 v{i}, 0')
    a('s_and_b32 s41, s40, 1          ; mb\ns_lshr_b32 s42, s40, 1         ; hs')
    a(f'''v_lshrrev_b32 v1, 5, v0          ; hf
v_bfe_u32 v2, v0, 2, 2           ; r
v_and_b32 v3, 3, v0              ; c
v_bfe_u32 v4, v0, 4, 1           ; G&1
v_lshl_add_u32 v5, v1, 3, v2
v_lshlrev_b32 v5, 9, v5          ; (8hf+r)*512
v_and_b32 v6, 1, v3
v_lshl_add_u32 v6, v4, 1, v6     ; cc
v_lshl_add_u32 v5, v6, 4, v5
v_lshrrev_b32 v7, 1, v3
v_lshl_add_u32 v5, v7, 3, v5
v_lshl_add_u32 v5, v2, 6, v5     ; + r*64
s_lshl_b32 s44, s42, 8
s_add_u32 s44, s44, {WSLOT[0]}
v_add_u32 v{WA}, s44, v5''')
    for n_ in range(1, 4): a(f'v_xor_b32 v{WA+n_}, {64*n_}, v{WA}')
    a(f'''v_and_b32 v2, 31, v0             ; m
v_bfe_u32 v3, v0, 1, 3
v_xor_b32 v3, v3, v1
v_lshlrev_b32 v3, 4, v3
v_lshl_add_u32 v3, v2, 7, v3
s_lshl_b32 s44, s41, 13
v_add_u32 v{XA}, s44, v3''')
    for s_ in range(1, 4): a(f'v_xor_b32 v{XA+s_}, {32*s_}, v{XA}')
    a(f'''v_lshlrev_b32 v{VL}, 4, v0
v_and_b32 v4, 15, v0
v_xor_b32 v4, v4, v1
v_lshlrev_b32 v4, 4, v4
v_lshl_add_u32 v4, v2, 8, v4
s_lshl_b32 s44, s40, 13
s_add_u32 s44, s44, {VBASE}
v_add_u32 v{KB}, s44, v4
s_waitcnt lgkmcnt(0)''')
    common_scalars()
    a('s_lshl_b32 s45, s41, 17\ns_lshl_b32 s44, s24, 1\ns_add_u32 s44, s44, s42\ns_lshl_b32 s44, s44, 11\ns_add_u32 s50, s45, s44\ns_add_u32 s50, s50, s48\ns_add_u32 s51, s50, 65536')
    a(f's_xor_b32 s44, s42, s49\ns_lshl_b32 s44, s44, 13\ns_lshl_b32 s45, s41, 12\ns_add_u32 s46, s44, s45\ns_add_u32 s46, s46, {PRING}')
    for jt in range(4): a(f's_add_u32 s44, s6, {jt+1}\ns_and_b32 s44, s44, 3\ns_lshl_b32 s{60+jt}, s44, 6')
    a('s_lshl_b32 s44, s5, 3\ns_add_u32 s44, s44, s7\ns_lshl_b32 s44, s44, 2\ns_add_u32 s44, s44, s24\ns_lshl_b32 s44, s44, 6')
    a('s_add_u32 s72, s44, s40')
    a(f's_lshl_b32 s45, s6, 2\ns_add_u32 s45, s45, s72\ns_mul_i32 s45, s45, 3072\ns_add_u32 s45, s45, {X_OFF}')
    a(f's_lshl_b32 s73, s6, 4\ns_add_u32 s73, s73, s72\ns_mul_i32 s73, s73, 3072\ns_add_u32 s73, s73, {X_OFF}')
    for jt in range(3):
        a(f's_mul_i32 s44, s{60+jt}, {16*3072//64}\ns_add_u32 s{76+jt}, s44, s45\ns_mul_i32 s44, s{60+jt}, {4*3072//64}\ns_add_u32 s{86+jt}, s44, s73')
    a('s_mul_i32 s44, s40, 49152\ns_add_u32 s79, s44, s45\ns_cmp_eq_u32 s40, s6\ns_cselect_b32 s79, {WS_SIZE}, s79'.replace('{WS_SIZE}', str(WS_SIZE)))
    for k in range(3): a(f's_cselect_b32 s{83+k}, s{86+k}, {WS_SIZE}')
    a('''s_mov_b32 s8, s52
s_mov_b32 s9, s53
s_mov_b32 s10, 2359296
s_mov_b32 s11, 0x20000
s_lshl_b32 s44, s7, 2
s_add_u32 s44, s44, s40
s_mul_i32 s44, s44, 73728
s_mul_i32 s45, s5, 1152
s_add_u32 s44, s44, s45
s_mul_i32 s45, s24, 288
s_add_u32 s44, s44, s45
s_add_u32 s12, s44, s63
s_add_u32 s13, s44, 256
s_add_u32 s72, s13, 36864
s_mov_b32 s73, 0xfffefffe
s_mov_b32 s74, 0x10001
s_mov_b32 s14, 0xffff0000''')
    a(f's_lshl_b32 s80, s40, 13\ns_add_u32 s80, s80, {VBASE}\ns_lshl_b32 s81, s40, 11\ns_add_u32 s81, s81, {PRING}')
    cls_index()
    cls_select(64, [(m[1] + 1) // 2 for m in o.runs])
    cls_select(65, [(m[3] + 1) // 2 for m in o.runs])
    for r_, k_ in zip((15, 25, 26, 27, 28), range(5)): a(f's_mov_b32 s{r_}, {(WSLOT[(k_+1)%5]-WSLOT[k_]) & 0xffffffff}')
    a(f's_mov_b32 s58, 0\ns_mov_b32 s66, {XSLOT[1]-XSLOT[0]}\ns_mov_b32 s67, {XSLOT[2]-XSLOT[1]}\ns_mov_b32 s68, {(XSLOT[0]-XSLOT[2]) & 0xffffffff}')
    a('s_mov_b32 s59, 0')
    if o.codepf:
        a(f'''s_lshr_b32 s44, s2, 3
s_cmp_lg_u32 s44, {o.codepf - 1}
s_cbranch_scc1 L_nopfc
L_pc:
s_getpc_b64 s[16:17]
s_sub_u32 s16, s16, L_pc+4-{name}
s_subb_u32 s17, s17, 0
s_mov_b32 s18, L_last-{name}
s_mov_b32 s19, 0x20000
s_lshl_b32 s44, s40, 13
v_lshlrev_b32 v1, 3, v{VL}
buffer_load_dword v251, v1, s[16:19], s44 offen
s_mov_b32 s59, 1
L_nopfc:''')
    npre = 0
    if o.touch:
        def touch(base, off):
            nonlocal npre
            a(f's_add_u32 s16, s{base}, {off}\ns_addc_u32 s17, s{base+1}, 0\nglobal_load_dword v252, v1, s[16:17]'); npre += 1
        a('v_mov_b32 v1, 0\ns_mov_b64 exec, 1\ns_cmp_lg_u32 s40, 1\ns_cbranch_scc1 L_nt1')
        a('s_lshl_b32 s44, s7, 20'); touch(30, 's44'); touch(32, 's44')
        a('s_mul_i32 s44, s6, %d' % (1024 * 1152)); touch(36, 's44'); a('s_add_u32 s44, s44, %d' % (1024 * 1152 - 4)); touch(36, 's44')
        a('s_add_u32 s59, s59, 4\nL_nt1:\ns_cmp_lg_u32 s40, 2\ns_cbranch_scc1 L_nt2')
        touch(38, 's50'); touch(38, 's76'); touch(52, 's12'); touch(38, FLAG_OFF)
        a('s_add_u32 s59, s59, 4\nL_nt2:\ns_mov_b64 exec, -1')
    for i in range(8): a(f'v_mov_b32 v{ACC+i}, 0')
    for n in (5, 4, 1):
        a(f's_cmp_lg_u32 s59, {n}\ns_cbranch_scc1 L_w{n}\ns_waitcnt vmcnt({n})\ns_branch L_wd\nL_w{n}:')
    a('s_waitcnt vmcnt(0)\nL_wd:')
    a('s_barrier')
    st(); pt('b0')
    def reads(ks):
        ksub = ks % 2; buf = FB + (ks & 1) * 24
        wimm = 0
        r = []
        for mt in range(2):
            r.append(f'ds_read_b128 {vr(buf+16+4*mt)}, v{XA+ks%4} offset:{mt*4096}')
        for n_ in range(4):
            for u in range(2):
                r.append(f'ds_read_b64_tr_b16 {vr(buf+4*n_+2*u,2)}, v{WA+n_} offset:{wimm+(16*ksub+4*u)*512}')
        return [r[0], r[2], r[3], r[1]] + r[4:]
    def mf1(ks):
        buf = FB + (ks & 1) * 24
        return [f'v_mfma_f32_32x32x16_bf16 {vr(ACC+(mt*4+n_)*16,16)}, {vr(buf+4*n_)}, {vr(buf+16+4*mt)}, {vr(ACC+(mt*4+n_)*16,16)}' for n_ in range(4) for mt in range(2)]
    S = [FB, FB + 16]
    A32 = 0; A16 = 64; OB = 72; VF = 136; PF = 152; PV = 160; WF = 192; SF = 224; VA = 232; WC = 236
    WSC = 251; PA = 245; VBs = 240; WBs = 241
    PT = [244, 246, 247, 249]
    def cvts(n_):
        r = []
        for mt in range(2):
            c = ACC + (mt * 4 + n_) * 16
            r += [f'v_cvt_pk_bf16_f32 v{c+i}, v{c+2*i}, v{c+2*i+1}' for i in range(8)]
        return r
    addr2 = f'''v_lshrrev_b32 v242, 9, v{VL}          ; hf
v_bfe_u32 v243, v{VL}, 6, 2           ; r
v_bfe_u32 v244, v{VL}, 4, 2           ; c
v_bfe_u32 v246, v{VL}, 8, 1           ; G&1
v_lshl_add_u32 v242, v242, 2, v243    ; 4hf+r
v_mul_u32_u24 v{VT}, 320, v242
v_lshl_add_u32 v{VT}, v246, 5, v{VT}
v_lshl_add_u32 v{WBs}, v244, 3, v{VT}
v_lshl_add_u32 v{VT}, v246, 4, v242
v_mul_u32_u24 v{VT}, 320, v{VT}
v_lshl_add_u32 v{VT}, v244, 3, v{VT}
v_add_u32 v{WSC}, 256, v{VT}
v_add_u32 v{WSC+1}, {2*DSLOT+256}, v{VT}
v_lshlrev_b32 v{VT}, 8, v242
v_lshl_add_u32 v{VT}, v243, 6, v{VT}
v_lshl_add_u32 v{VT}, v246, 5, v{VT}
v_lshl_add_u32 v{VT}, v244, 3, v{VT}
v_add_u32 v{VBs}, s80, v{VT}
v_add_u32 v{PA}, s81, v{VL}
v_mul_u32_u24 v{VT}, 0x55, v244
v_add_u32 v{VT}, s56, v{VT}'''.split('\n')
    for j in range(4): addr2 += [f'v_bfe_u32 v{PT[j]}, v{VT}, {2*j}, 2', f'v_mul_u32_u24 v{PT[j]}, 0x8001, v{PT[j]}', f'v_and_b32 v{PT[j]}, s74, v{PT[j]}']
    addr2 += cvts(0)
    def kstep(ks, last=False, hook=None, upd=True):
        gaps = [[] for _ in range(8)]
        if not last:
            rd = reads(ks + 1)
            if ks % 4 == 0 and hook:
                gaps[0] += ['s_cmp_eq_u32 s58, s64', f's_cbranch_scc0 {hook}', 's_call_b64 s[70:71], L_kread', f'{hook}:']
            for i in range(5): gaps[i] += rd[2*i:2*i+2]
            if upd: gaps[5].append(f'v_add_u32 v{XA+ks%4}, s66, v{XA+ks%4}')
            if ks % 2 == 0:
                gaps[5] += [f'v_add_u32 v{WA+n_}, s15, v{WA+n_}' for n_ in range(4)]
                gaps[6] += ['s_mov_b32 s44, s15', 's_mov_b32 s15, s25', 's_mov_b32 s25, s26', 's_mov_b32 s26, s27', 's_mov_b32 s27, s28', 's_mov_b32 s28, s44']
            if upd and ks % 4 == 3:
                gaps[5] += ['s_mov_b32 s44, s66', 's_mov_b32 s66, s67', 's_mov_b32 s67, s68', 's_mov_b32 s68, s44']
                gaps[6] += ['s_add_u32 s58, s58, 1'] + (['s_cmp_lt_u32 s58, 8'] if ks == 3 else [])
        if last:
            for i in range(7): gaps[i] = addr2[6*i:6*i+6]
            gaps[7] = addr2[42:]
        if ks == 1 and not upd: gaps[6].append(f'v_readfirstlane_b32 s56, v{KB}')
        for mm, g in zip(mf1(ks), gaps):
            a(mm)
            for x in g: a(x)
        if not last: a('s_waitcnt lgkmcnt(0)')
        if ks % 2 == 0: a('s_barrier')
        if ks != 3: st.dyn()
    for x in reads(0): a(x)
    a('s_waitcnt lgkmcnt(0)')
    a('L_g1:')
    for ks in range(4): kstep(ks, hook=f'L_nk{ks}')
    a('s_cbranch_scc1 L_g1')
    a(f'v_mov_b32 v{KB}, {F_TAG}\nds_read_b32 v{KB}, v{KB}')
    for ks in range(4): kstep(ks, last=(ks == 3), upd=False)
    st(); pt('gemm')
    if o.stop1:
        st(); st.flush(); a('s_endpgm')
    for n_ in range(4):
        nx = cvts(n_ + 1) if n_ < 3 else []
        k = 0
        for sp in range(2):
            for mt in range(2):
                c = ACC + (mt * 4 + n_) * 16 + 4 * sp
                src = '0' if (n_ == 0 and sp == 0) else vr(S[mt], 16)
                a(f'v_mfma_f32_32x32x16_bf16 {vr(S[mt],16)}, {vr(KR+(mt*8+2*n_+sp)*4)}, {vr(c)}, {src}')
                for x in nx[4*k:4*k+4]: a(x)
                if n_ == 3 and k == 0: a(f's_mov_b32 s44, {hex(CEXP)}\ns_mov_b32 s45, {hex(CEXP)}\nv_add_u32 v8, s46, v{VL}\ns_mov_b32 s57, 0x7fff7fff')
                if n_ == 3 and k == 1:
                    for i in range(6): a(f'v_mov_b32 v{A16+i}, 0')
                if n_ == 3 and k == 2:
                    for i in range(6, 8): a(f'v_mov_b32 v{A16+i}, 0')
                k += 1
    for t in range(4): a(f'v_xor_b32 v{VA+t}, {64*t}, v{VBs}')
    for t in range(4): a(f'v_add_u32 v{WC+t}, s{60+t}, v{WBs}')
    for t in range(4): a(f'v_add_u32 v{WC+4+t}, {2*DSLOT}, v{WC+t}')
    st()
    M = [0, 4]
    for i in (0, 3, 5, 7, 9, 11, 13, 15):
        for mt in range(2):
            s = S[mt]; t = M[mt]
            if i == 0: a(f'v_max3_f32 v{t}, v{s}, v{s+1}, v{s+2}')
            elif i < 15: a(f'v_max3_f32 v{t}, v{t}, v{s+i}, v{s+i+1}')
            else: a(f'v_max_f32 v{t}, v{t}, v{s+15}')
    for mt in range(2): a(f'v_mov_b32 v{M[mt]+1}, v{M[mt]}')
    a('s_nop 0')
    for mt in range(2): a(f'v_permlane32_swap_b32 v{M[mt]}, v{M[mt]+1}')
    a('s_nop 0')
    for mt in range(2): a(f'v_max_f32 v{M[mt]}, v{M[mt]}, v{M[mt]+1}')
    for mt in range(2): a(f'v_mul_f32 v{M[mt]}, s44, v{M[mt]}')
    for mt in range(2):
        s = S[mt]; t = M[mt]
        for i in range(0, 16, 2): a(f'v_pk_fma_f32 {vr(s+i,2)}, {vr(s+i,2)}, s[44:45], {vr(t,2)} op_sel_hi:[1,0,0] neg_lo:[0,0,1] neg_hi:[0,0,1]')
        for i in range(16): a(f'v_exp_f32 v{s+i}, v{s+i}')
    for i in range(2, 16, 2):
        for mt in range(2):
            s = S[mt]; t = M[mt]
            if i == 2: a(f'v_pk_add_f32 {vr(t,2)}, {vr(s,2)}, {vr(s+2,2)}')
            else: a(f'v_pk_add_f32 {vr(t,2)}, {vr(t,2)}, {vr(s+i,2)}')
    for mt in range(2): a(f'v_add_f32 v{M[mt]}, v{M[mt]}, v{M[mt]+1}')
    for mt in range(2): a(f'v_mov_b32 v{M[mt]+1}, v{M[mt]}')
    a('s_nop 0')
    for mt in range(2): a(f'v_permlane32_swap_b32 v{M[mt]}, v{M[mt]+1}')
    a('s_nop 0')
    for mt in range(2): a(f'v_add_f32 v{M[mt]}, v{M[mt]}, v{M[mt]+1}')
    for mt in range(2): a(f'v_rcp_f32 v{M[mt]}, v{M[mt]}')
    st(lvl=2)
    for mt in range(2):
        s = S[mt]; t = M[mt]
        if mt == 0: a('s_nop 0')
        for i in range(0, 16, 2): a(f'v_pk_mul_f32 {vr(s+i,2)}, {vr(s+i,2)}, {vr(t,2)} op_sel_hi:[1,0]')
        for i in range(8): a(f'v_cvt_pk_bf16_f32 v{s+i}, v{s+2*i}, v{s+2*i+1}')
        for i in range(8): a(f'v_lshl_or_b32 v{s+i}, v{PT[i%4]}, 15, v{s+i}')
        for sp in range(2): a(f'buffer_store_dwordx4 {vr(S[mt]+4*sp)}, v{VL}, s[20:23], s{50+mt} offen offset:{sp*1024}{o.pst}')
        st(lvl=2)
        for sp in range(2): a(f'ds_write_b128 v8, {vr(s+4*sp)} offset:{mt*2048+sp*1024}')
    st()
    a('s_waitcnt lgkmcnt(0)\ns_barrier')
    st(); pt('c2')
    NWF = 8; AH = o.ah
    class T: pass
    tr = T(); tr.lg = []; tr.done = -1; tr.emit = True; tr.marks = [0, 0, 0]; tr.waits = set(); tr.k = 0
    def out(x):
        if tr.emit: a(x)
    def lds(x, tag): out(x); tr.lg.append(tag)
    def wait_lds(*tags):
        last = max(j for j, t in enumerate(tr.lg) if t in tags)
        if tr.done >= last: return
        n = min(15, len(tr.lg) - 1 - last, len(tr.lg) - tr.marks[-2])
        out(f's_waitcnt lgkmcnt({n})'); tr.done = len(tr.lg) - 1 - n; tr.waits.add(tr.k - 1)
    def newgap(): tr.marks.append(len(tr.lg))
    mf32 = lambda c, x, y, z=None: f'v_mfma_f32_32x32x16_bf16 {vr(c,16)}, {vr(x)}, {vr(y)}, {vr(c,16) if z is None else z}'
    def pread(pos): return [(f'ds_read_b128 {vr(PF+4*s_)}, v{PA} offset:{(pos&1)*8192+s_*1024}', ('p', pos)) for s_ in range(2)]
    def vread(pos, t): return [(f'ds_read_b64_tr_b16 {vr(VF+(t&1)*8+4*s_+2*u,2)}, v{VA+t} offset:{(pos&1)*32768+(16*s_+8*u)*256}', ('v', pos, t, s_)) for s_ in range(2) for u in range(2)]
    def pvm1(pos, t, s_):
        wait_lds(('p', pos), ('v', pos, t, s_), ('v', pos, t, 1 if t == 3 else s_))
        out(mf32(PV + (t & 1) * 16, VF + (t & 1) * 8 + 4 * s_, PF + 4 * s_, None if s_ else '0'))
    def pvc(pos, t):
        s = PV + (t & 1) * 16; d = OB + (pos & 1) * 32 + t * 8
        return [f'v_cvt_pk_bf16_f32 v{d+i}, v{s+2*i}, v{s+2*i+1}' for i in range(8)]
    def wread(n, pos, jt, ks):
        return [(f'ds_read_b64_tr_b16 {vr(WF+(n%NWF)*4+2*h,2)}, v{WC+(pos&1)*4+jt} offset:{(ks//4)*DSLOT+(16*(ks%4)+8*h)*320}', ('w', n)) for h in range(2)]
    def wreadk(G): return wread(G, G // 32, G % 4, (G % 32) // 4)
    def sread(B):
        return [(f'ds_read_b64_tr_b16 {vr(SF+(B&1)*4+2*h,2)}, v{WSC+((B//4)&1)} offset:{((B//2)%2)*DSLOT+(32*(B&1)+8*h)*320}', ('s', B)) for h in range(2)]
    def swaps(B, buf=None):
        f = OB + (((B // 4) & 1) if buf is None else buf) * 32 + (B % 4) * 8
        return [f'v_permlane16_swap_b32 v{f+i}, v{f+4+i}' for i in range(4)]
    def smm(B, qt, buf=None):
        wait_lds(('s', B))
        f = OB + (((B // 4) & 1) if buf is None else buf) * 32 + (B % 4) * 8 + 4 * qt
        c = vr(A16 + 4 * qt)
        out(f'v_mfma_f32_16x16x32_bf16 {c}, {vr(SF+(B&1)*4)}, {vr(f)}, {c}')
    PVAT = dict(zip(o.pvat, [(t, s_) for t in range(4) for s_ in range(2)]))
    seq = []
    for J in range(32):
        seq.append(('W', J))
        if J % 8 == 2: seq.append(('S', J // 8 - 1, 0))
        if J % 8 == 3: seq.append(('S', J // 8 - 1, 1))
        if J in PVAT: seq.append(('P',) + PVAT[J])
    at = {x: k for k, x in enumerate(seq)}
    caps = [8 if x[0] == 'S' else 24 for x in seq]
    BAR1, BAR2 = at[('W', o.bar1)], at[('W', o.bar2)]
    assert BAR2 > at[('P', 3, 0)]
    def steady_tasks(pos):
        q = pos + 1; G0 = 32 * pos; B0 = 4 * pos; E = len(seq) - 1
        T_ = []
        ws = [at[('W', n)] for n in range(0, 32, 4)]
        dl = lambda c: max(w for w in ws if w <= c) - 3
        T_.append(Task('s_barrier', V, BAR1, BAR1, name='b1')); T_.append(Task('s_barrier', V, BAR2, BAR2, name='b2'))
        for n in range(AH, 32 + AH):
            e = at[('W', n - NWF)] if n >= NWF else 0
            af = 'b2' if n >= 32 else 'b1' if n >= 16 else None
            l = max(dl(at[('W', n)]), e) if n < 32 else E - 2 if n < 36 else E
            for x, t in wreadk(G0 + n): T_.append(Task(x, R, e, l, tag=t, after=af))
        for b in range(-1, 3):
            e = at[('W', 8 * b + 7)] if b >= 0 else 0
            for x in swaps(B0 + b): T_.append(Task(x, V, e, at[('S', b, 0)] - 2, name=('sw', b)))
        for b in range(4):
            e = at[('S', b - 2, 1)] if b >= 1 else 0
            for x, t in sread(B0 + b): T_.append(Task(x, R, e, dl(at[('S', b, 0)]) if b < 3 else E - 2, tag=t, after='b1' if b >= 2 else None))
        for k, (x, t) in enumerate(pread(q)): T_.append(Task(x, R, 0, BAR1, tag=t, after='b1', name=('pr', k)))
        for i in range(8):
            T_.append(Task(f'v_and_b32 v{PF+i}, s57, v{PF+i}', V, 0, at[('P', 0, i // 4)] - 2, after=('pr', 1), gapafter=2)); T_[-1].needs = ('p', q)
        for t_ in range(4):
            for x, t in vread(q, t_):
                e = at[('P', t_ - 2, t[3])] if t_ >= 2 else 0
                T_.append(Task(x, R, e, max(dl(at[('P', t_, 0 if t_ == 3 else t[3])]), e, BAR1 + 1), tag=t, after='b1'))
        for t_ in range(3):
            l = at[('P', t_ + 2, 0)] - 1 if t_ < 2 else E
            for x in pvc(q, t_)[:o.c2split if t_ == 2 else 8]: T_.append(Task(x, V, at[('P', t_, 1)] + 4, l))
        for x in pvc(pos, 2)[o.c2split:]: T_.append(Task(x, V, 0, at[('W', 14)]))
        for x in pvc(pos, 3): T_.append(Task(x, V, 0, at[('P', 1, 0)] - 1))
        return T_
    def emit_slots(pos, plan, k0, k1, first=False):
        for k in range(k0, k1):
            x = seq[k]; tr.k = k
            if x[0] == 'W':
                G = 32 * pos + x[1]
                wait_lds(('w', G))
                out(mf32(A32 + (G % 4) * 16, WF + (G % NWF) * 4, OB + (pos & 1) * 32 + (x[1] // 4) * 4, '0' if first and G < 4 else None))
            elif x[0] == 'S':
                if not (first and x[1] < 0): smm(4 * pos + x[1], x[2])
            else: pvm1(pos + 1, x[1], x[2])
            newgap()
            for t in plan[k]:
                if first and t.name == ('sw', -1): continue
                if getattr(t, 'needs', None): tr.k = k + 1; wait_lds(t.needs)
                if t.tag: lds(t.text, t.tag)
                else: out(t.text)
            if x[0] == 'W' and x[1] % 8 == 7 and tr.emit and not first: st.dyn()
    def prologue():
        for x, t in pread(0) + vread(0, 0) + vread(0, 1): lds(x, t)
        out('s_mov_b32 s47, 0')
        tr.marks += [0, 0]
        wait_lds(('p', 0))
        for i in range(8): out(f'v_and_b32 v{PF+i}, s57, v{PF+i}')
        pvm1(0, 0, 0); pvm1(0, 0, 1)
        for x, t in vread(0, 2): lds(x, t)
        pvm1(0, 1, 0); pvm1(0, 1, 1)
        for x, t in vread(0, 3): lds(x, t)
        out('s_nop 1')
        for x in pvc(0, 0): out(x)
        pvm1(0, 2, 0); pvm1(0, 2, 1)
        for G in range(AH):
            for x, t in wreadk(G): lds(x, t)
        out('s_nop 0')
        for x in pvc(0, 1): out(x)
        pvm1(0, 3, 0); pvm1(0, 3, 1)
        for x in pvc(0, 2): out(x)
        out('s_nop 3')
        tr.marks += [len(tr.lg), len(tr.lg)]
    K1 = at[('W', 8)]
    reserve = {}
    for it in range(4):
        tr.emit = False; tr.lg = []; tr.done = -1
        prologue()
        for pos in range(3):
            tr.waits = set()
            emit_slots(pos, place(caps, steady_tasks(pos), reserve), 0, len(seq), first=(pos == 0))
        reserve = {k % len(seq): V for k in tr.waits}
    if o.verbose:
        pl = place(caps, steady_tasks(2), reserve)
        over = 0
        for k, x in enumerate(seq):
            c = sum(t.cost for t in pl[k]) + reserve.get(k, 0); over += max(0, c - caps[k])
            print(k, x, caps[k], c, [t.text.split()[0][-12:] for t in pl[k]])
        print('overflow', over, 'waits', len(reserve))
    tr.emit = True; tr.lg = []; tr.done = -1
    prologue()
    plan = lambda pos: place(caps, steady_tasks(pos), reserve)
    emit_slots(0, plan(0), 0, K1, first=True)
    a('s_branch L_p2e')
    tr.emit = False
    emit_slots(0, plan(0), K1, len(seq)); emit_slots(1, plan(1), 0, len(seq))
    tr.emit = True
    a('L_p2:')
    emit_slots(2, plan(2), 0, K1)
    a('L_p2e:'); tr.done = -1
    emit_slots(2, plan(2), K1, len(seq))
    emit_slots(3, plan(3), 0, len(seq))
    a('s_add_u32 s47, s47, 1\ns_cmp_lt_u32 s47, 3\ns_cbranch_scc1 L_p2\nL_p2x:')
    st()
    sh = lambda t: (t[0], t[1] + (64 if t[0] == 'w' else 8 if t[0] == 's' else 2)) + t[2:] if isinstance(t, tuple) else t
    tr.lg = [sh(t) for t in tr.lg]
    GS = 136; RC = 160; RM = 184; A2 = 0; A3 = 16; ZZ = 24; RR = 32
    order = [(6, J % 4, J // 4) for J in range(8)]
    for p_, jt in ((6, 0), (6, 1), (7, 0), (7, 1), (6, 2), (7, 2), (6, 3), (7, 3)):
        order += [(p_, jt, ks) for ks in range(2 if p_ == 6 else 0, 8)]
    wi = {x: n for n, x in enumerate(order)}
    after = {2: [('S', 23, 0)], 3: [('S', 23, 1)], 10: [('S', 24, 0)], 11: [('S', 24, 1)]}
    for k, n in enumerate(o.tpv): after.setdefault(n, []).append(('P', k // 2, k % 2))
    for B in range(25, 32):
        n = wi[(6 + (B - 24) // 4, 3, 2 * (B % 4) + 1)]
        after.setdefault(min(n + 1, 63), []).append(('S', B, 0)); after.setdefault(min(n + 2, 63), []).append(('S', B, 1))
    tseq = []
    for n in range(64): tseq += [('W', n)] + after.get(n, [])
    ta = {x: k for k, x in enumerate(tseq)}; E = len(tseq) - 1
    b13 = ta[('S', 23, 1)]
    T_ = [Task('s_barrier', V, b13, b13, name='b13'), Task('s_barrier', V, ta[('W', o.tb14)], ta[('W', o.tb14)], name='b14'),
          Task('s_barrier', V, ta[('W', o.tb15)], ta[('W', o.tb15)], name='b15')]
    for n in range(AH, 64):
        p_, jt, ks = order[n]
        u = 2 * p_ + ks // 4
        for x, t in wread(192 + n, p_, jt, ks): T_.append(Task(x, R, ta[('W', n - NWF)] if n >= NWF else 0, ta[('W', n)] - 3, tag=t, after=f'b{u}' if u >= 13 else None))
    for x in swaps(23): T_.append(Task(x, V, 0, ta[('S', 23, 0)] - 2))
    for x in pvc(6, 2)[o.c2split:]: T_.append(Task(x, V, 0, ta[('W', 8)]))
    for k, x in enumerate(pvc(6, 3)): T_.append(Task(x, V, 0, min(ta[('P', 1, 0)] - 1, ta[('W', wi[(6, 0, 6)])] - 2)))
    for x in swaps(24): T_.append(Task(x, V, ta[('W', 7)], ta[('S', 24, 0)] - 2))
    for B in range(25, 32):
        k = ta[('W', wi[(6 + (B - 24) // 4, 3, 2 * (B % 4) + 1)])]
        for x in swaps(B): T_.append(Task(x, V, k, k))
    for B in range(24, 32):
        u = B // 2
        for x, t in sread(B): T_.append(Task(x, R, ta[('S', B - 2, 1)] if B >= 25 else 0, ta[('S', B, 0)] - 2, tag=t, after=f'b{u}' if u >= 13 else None))
    for k, (x, t) in enumerate(pread(7)): T_.append(Task(x, R, 0, b13, tag=t, after='b13', name=('pr', k)))
    for i in range(8):
        T_.append(Task(f'v_and_b32 v{PF+i}, s57, v{PF+i}', V, 0, ta[('P', 0, i // 4)] - 2, after=('pr', 1), gapafter=2)); T_[-1].needs = ('p', 7)
    for t_ in range(4):
        for x, t in vread(7, t_): T_.append(Task(x, R, ta[('P', t_ - 2, t[3])] if t_ >= 2 else 0, ta[('P', t_, 0 if t_ == 3 else t[3])] - 2, tag=t, after='b13'))
        l = ta[('W', wi[(7, 0, 2 * t_)])] - 2
        if t_ < 2: l = min(l, ta[('P', t_ + 2, 0)] - 1)
        for x in pvc(7, t_): T_.append(Task(x, V, ta[('P', t_, 1)] + 4, l))
    def send(src, dst, n, soff, off0, done, nm):
        for i in range(n):
            l = min(E, done + 1 + i // 2)
            T_.append(Task(f'v_cvt_pk_bf16_f32 v{dst+i}, v{src+2*i}, v{src+2*i+1}', V, done, l, name=(nm, 'c', i)))
            T_.append(Task(f'v_and_or_b32 v{dst+i}, v{dst+i}, s73, v{PT[i%4]}', V, done, l, name=(nm, 'a', i), after=(nm, 'c', i)))
            if i % 4 == 3:
                T_.append(Task(f'buffer_store_dwordx4 {vr(dst+i-3)}, v{VL}, s[20:23], s{soff} offen offset:{off0+(i//4)*1024} sc1', R, done, l, after=(nm, 'a', i)))
    for jt in range(3): send(16 * jt, GS + 8 * jt, 8, 76 + jt, 0, ta[('W', wi[(7, jt, 7)])] + 4, ('t', jt))
    ad = f'''v_lshrrev_b32 v{ZZ}, 4, v{VL}
v_and_b32 v{ZZ+1}, 31, v{ZZ}
v_mul_u32_u24 v{ZZ+1}, 2304, v{ZZ+1}
v_lshrrev_b32 v{ZZ+2}, 5, v{ZZ}
v_lshl_add_u32 v{ZZ+1}, v{ZZ+2}, 4, v{ZZ+1}
v_and_b32 v{ZZ+2}, 15, v{ZZ}
v_mul_u32_u24 v{ZZ+2}, 2304, v{ZZ+2}
v_lshrrev_b32 v{ZZ+3}, 4, v{ZZ}
v_lshl_add_u32 v{ZZ+2}, v{ZZ+3}, 3, v{ZZ+2}
v_mov_b32 v{ZZ+3}, 0x8000'''.split('\n')
    for k, x in enumerate(ad): T_.append(Task(x, V, ta[('W', wi[(7, 1, 7)])] + 10, E, name=('ad', k), after=('ad', k - 1) if k else None))
    rload = lambda k, rc, n, off0, so: [f'buffer_load_dwordx4 {vr(rc+n*k+4*g)}, v{VL}, s[20:23], s{so+k} offen offset:{off0+g*1024} sc1' for g in range(n // 4)]
    for k, n in zip((2, 1, 0), o.xl):
        for x in rload(k, RC, 8, 0, 86): T_.append(Task(x, R, ta[('W', n)], ta[('W', n)]))
    tplan = place([8 if x[0] == 'S' else 24 for x in tseq], T_, {k: V for k in range(0, E, 3)})
    for k, x in enumerate(tseq):
        tr.k = k
        if x[0] == 'W':
            p_, jt, ks = order[x[1]]
            wait_lds(('w', 192 + x[1]))
            out(mf32(A32 + jt * 16, WF + ((192 + x[1]) % NWF) * 4, OB + (p_ & 1) * 32 + ks * 4))
        elif x[0] == 'P': pvm1(7, x[1], x[2])
        else:
            if x == ('S', 31, 0) and tseq[k - 1][0] == 'W': out('s_nop 1')
            smm(x[1], x[2])
        newgap()
        for t in tplan[k]:
            if getattr(t, 'needs', None): wait_lds(t.needs)
            if t.tag: lds(t.text, t.tag)
            else: out(t.text)
        if o.verbose: print('tail', k, x, sum(t.cost for t in tplan[k]), [t.text.split()[0][-12:] for t in tplan[k]])
    a('s_nop 6')
    for i in range(4): a(f'v_cvt_pk_bf16_f32 v{RM+i}, v{A16+2*i}, v{A16+2*i+1}')
    for i in range(4): a(f'v_and_or_b32 v{RM+i}, v{RM+i}, s73, v{PT[i]}')
    a(f'buffer_store_dwordx4 {vr(RM)}, v{VL}, s[20:23], s79 offen offset:2048 sc1')
    for k in (2, 1, 0): a(rload(k, RR, 4, 2048, 83)[0])
    st(); pt('mfma')
    OWN = 48; CK = ZZ + 4; TM = ZZ + 6
    def gather(lbl, own, acc, n, rc, off0, younger):
        for again in (0, 1):
            if again:
                a(f's_mov_b32 s59, 0\n{lbl}:')
                for k in (2, 1, 0):
                    for x in rload(k, rc, n, off0, 86): a(x)
                a('s_add_u32 s59, s59, 1')
            a(f'v_mov_b32 v{CK}, 0')
            for m, k in enumerate((2, 1, 0)):
                a(f's_waitcnt vmcnt({(2 - m) * (n // 4) + (0 if again else younger)})')
                for i in range(n):
                    r = rc + n * k + i
                    a(f'v_xor_b32 v{r}, v{r}, v{PT[i%4]}\nv_lshl_or_b32 v{TM}, v{r}, 16, v{ZZ+3}\nv_and_or_b32 v{TM+1}, v{r}, s14, v{ZZ+3}')
                    a(f'v_pk_add_f32 {vr(acc+2*i,2)}, {vr((own if m == 0 else acc)+2*i,2)}, {vr(TM,2)}')
                    if i % 2: a(f'v_or3_b32 v{CK}, v{CK}, v{r-1}, v{r}')
            a(f'v_and_b32 v{CK}, s74, v{CK}\nv_cmp_ne_u32 vcc, 0, v{CK}\ns_cbranch_vccz {lbl}x')
        a(f's_cmp_lt_u32 s59, {SPIN}\ns_cbranch_scc1 {lbl}\n{lbl}x:')
    if st.on: a('s_mov_b32 s59, 0')
    gather('L_xa', OWN, A2, 8, RC, 0, 4)
    st(); pt('xgo')
    st.val('s59')
    for i in range(8): a(f'v_cvt_pk_bf16_f32 v{A2+i}, v{A2+2*i}, v{A2+2*i+1}')
    a('s_nop 1')
    for h in range(2):
        a(f'v_permlane32_swap_b32 v{A2+4*h}, v{A2+4*h+2}\nv_permlane32_swap_b32 v{A2+4*h+1}, v{A2+4*h+3}')
    for h in range(2): a(f'buffer_store_dwordx4 {vr(A2+4*h)}, v{ZZ+1}, s[8:11], s12 offen offset:{32*h}{o.out_flags}')
    a('s_cmp_lg_u32 s40, s6\ns_cbranch_scc1 L_xrx')
    gather('L_xb', A16, A3, 4, RR, 2048, 2)
    for i in range(4): a(f'v_cvt_pk_bf16_f32 v{A3+i}, v{A3+2*i}, v{A3+2*i+1}')
    a(f'buffer_store_dwordx2 {vr(A3,2)}, v{ZZ+2}, s[8:11], s13 offen{o.out_flags}\nbuffer_store_dwordx2 {vr(A3+2,2)}, v{ZZ+2}, s[8:11], s72 offen{o.out_flags}')
    a('L_xrx:')
    if st.on:
        st(); a('s_waitcnt vmcnt(0)'); st(); st.flush()
    if o.amp:
        a('s_waitcnt vmcnt(0)'); pt('end')
        a(f'''s_sub_u32 s98, s96, s94
s_mul_i32 s98, s98, {o.amp}
s_memrealtime s[96:97]
s_waitcnt lgkmcnt(0)
L_amp:
s_memrealtime s[94:95]
s_waitcnt lgkmcnt(0)
s_sub_u32 s99, s94, s96
s_cmp_lt_u32 s99, s98
s_cbranch_scc1 L_amp''')
    a('s_endpgm')
    a('L_kread:\ns_cmp_eq_u32 s64, s65\ns_cbranch_scc1 L_kread1')
    for mt in range(2):
        if mt: a('L_kread1:')
        for s_ in range(8):
            a(f'v_xor_b32 v{VT}, {32*s_}, v{KB}\nds_read_b128 {vr(KR+(mt*8+s_)*4)}, v{VT}')
        if mt == 0: a('s_mov_b32 s64, s65')
        a('s_setpc_b64 s[70:71]')
    a('L_last:')
    a('.section .rodata,"a"')
    a(kd(name, 256))
    return a.text()

if __name__ == '__main__':
    Opt.verbose = True
    t = gen()
    e = hazard.check(t)
    print(len(e), 'hazards'); print('\n'.join(e[:40]))
    open(sys.argv[1], 'w').write(t)
```
